```python
import torch

def _softmax(x, axis=-1):
    return torch.softmax(x, dim=axis)
def _gelu(x):
    return torch.nn.functional.gelu(x, approximate="tanh")
def _silu(x):
    return torch.nn.functional.silu(x)
def _sigmoid(x):
    return torch.sigmoid(x)
def _layernorm(x, axis=-1, eps=1e-5):
    m = x.mean(dim=axis, keepdim=True)
    v = x.var(dim=axis, keepdim=True, unbiased=False)
    return (x - m) / torch.sqrt(v + eps)
def _scatter_add(tgt, idx, src, axis=0):
    return tgt.clone().index_add_(axis, idx, src)
def _segment_sum(src, seg, n):
    out = torch.zeros((n,) + src.shape[1:], dtype=src.dtype)
    return out.index_add_(0, seg, src)
def _pad(x, pw):
    flat = tuple(v for pair in reversed(pw) for v in pair)
    return torch.nn.functional.pad(x, flat)

kernel_name = 'standalone__mha_block_cached__near_ridge'

def setup_inputs():

    _w = (lambda a: (lambda t: t.to(torch.bfloat16) if t.is_floating_point() else t)(torch.as_tensor(a)))
    B, Sq, D = 8, 224, 576
    H, Sk, Dh = 32, 512, 128
    return {
        "x": _w((lambda *s: torch.randn(*s, dtype=torch.bfloat16) * 0.8)(B, Sq, D)),
        "k_cache": _w((lambda *s: torch.randn(*s, dtype=torch.bfloat16) * 0.8)(B, H, Sk, Dh)),
        "v_cache": _w((lambda *s: torch.randn(*s, dtype=torch.bfloat16) * 0.05)(B, H, Sk, Dh)),
        "wq": _w((lambda *s: torch.randn(*s, dtype=torch.bfloat16) * 0.8)(D, H * Dh) * (D ** -0.5)),
        "wo": _w((lambda *s: torch.randn(*s, dtype=torch.bfloat16) * 0.05)(H * Dh, D) * ((H * Dh) ** -0.5)),
    }

def reference(x, k_cache, v_cache, wq, wo):
    B, Sq, D = x.shape
    H, Dh = 32, 128
    q = (lambda x, *d: x.permute(*d))((x @ wq).reshape(B, Sq, H, Dh), 0, 2, 1, 3)
    scores = torch.einsum("bhqd,bhkd->bhqk", q, k_cache) * (Dh ** -0.5)
    p = _softmax(scores, axis=-1)
    o = torch.einsum("bhqk,bhkd->bhqd", p, v_cache)
    return (lambda x, *d: x.permute(*d))(o, 0, 2, 1, 3).reshape(B, Sq, H * Dh) @ wo
```

```python
import re

REG_RE = re.compile(r'^(-|abs\()?([vsa])(?:(\d+)|\[(\d+):(\d+)\])\)?$')

def regs_of(tok):
    tok = tok.strip()
    if tok == 'vcc': return [('s', 106), ('s', 107)]
    if tok == 'vcc_lo': return [('s', 106)]
    if tok == 'exec': return [('s', 126), ('s', 127)]
    if tok == 'm0': return [('s', 124)]
    m = REG_RE.match(tok)
    if not m: return []
    k = m.group(2)
    if m.group(3) is not None:
        return [(k, int(m.group(3)))]
    return [(k, i) for i in range(int(m.group(4)), int(m.group(5)) + 1)]

def split_ops(s):
    out, depth, cur = [], 0, ''
    for ch in s:
        if ch in '[(': depth += 1
        if ch in '])': depth -= 1
        if ch == ',' and depth == 0:
            out.append(cur.strip()); cur = ''
        else:
            cur += ch
    if cur.strip(): out.append(cur.strip())
    return out

TRANS = ('v_exp_f32', 'v_log_f32', 'v_rcp_f32', 'v_rsq_f32', 'v_sqrt_f32', 'v_sin_f32', 'v_cos_f32')

class Ins:
    __slots__ = ('text', 'mn', 'reads', 'writes', 'kind', 'ws', 'srcc', 'ab', 'passes', 'lds_dma', 'wide_store')
    def __init__(self, text):
        self.text = text
        t = text.split(';')[0].strip()
        parts = t.split(None, 1)
        self.mn = parts[0]
        rest = parts[1] if len(parts) > 1 else ''
        ops = split_ops(rest)
        ops2 = []
        mods = []
        for o in ops:
            w = o.split()
            ops2.append(w[0]); mods += w[1:]
        ops = ops2
        mn = self.mn
        self.reads, self.writes = [], []
        self.kind = 'other'; self.ws = 1; self.srcc = []; self.ab = []; self.passes = 0
        self.lds_dma = False; self.wide_store = False
        R = lambda i: regs_of(ops[i]) if i < len(ops) else []
        if mn == 's_nop':
            self.ws = int(ops[0], 0) + 1; self.kind = 'nop'
        elif mn.startswith('v_mfma'):
            self.kind = 'mfma'
            self.writes = R(0); self.ab = R(1) + R(2); self.srcc = R(3)
            self.reads = self.ab + self.srcc
            self.passes = 8 if '32x32x16' in mn else 4
        elif mn.startswith('ds_read') or mn.startswith('ds_bpermute') or mn.startswith('ds_swizzle') or mn in ('ds_append', 'ds_consume') or '_rtn_' in mn:
            self.kind = 'dsr'; self.writes = R(0); self.reads = R(1) + R(2)
        elif mn.startswith('ds_write') or mn.startswith('ds_add'):
            self.kind = 'dsw'; self.reads = R(0) + R(1) + R(2)
        elif mn.startswith('buffer_load'):
            self.kind = 'vmem'
            if 'lds' in mods:
                self.lds_dma = True
                self.reads = R(0) + R(1) + R(2) + [('s', 124)]
            else:
                self.writes = R(0); self.reads = R(1) + R(2) + R(3)
        elif mn.startswith('buffer_store') or mn.startswith('buffer_atomic'):
            self.kind = 'vmem'; self.reads = R(0) + R(1) + R(2) + R(3)
            self.wide_store = 'x4' in mn or 'x3' in mn
            self.ab = R(0)
        elif mn.startswith('global_load'):
            self.kind = 'vmem'; self.writes = R(0); self.reads = R(1) + R(2)
        elif mn.startswith('global_store') or mn.startswith('global_atomic'):
            self.kind = 'vmem'; self.reads = R(0) + R(1) + R(2)
            self.wide_store = 'x4' in mn or 'x3' in mn
            self.ab = R(1)
        elif mn.startswith('v_permlane'):
            self.kind = 'perm'; self.writes = R(0) + R(1); self.reads = R(0) + R(1)
        elif mn.startswith('v_readfirstlane') or mn.startswith('v_readlane'):
            self.kind = 'rdlane'; self.writes = R(0); self.reads = R(1) + R(2)
        elif mn.startswith('v_cmp'):
            self.kind = 'valu'; self.writes = R(0); self.reads = R(1) + R(2)
        elif mn.startswith('v_'):
            self.kind = 'trans' if mn.split('_e')[0] in TRANS or mn in TRANS else 'valu'
            self.writes = R(0)
            self.reads = sum((R(i) for i in range(1, len(ops))), [])
            if mn.startswith('v_fmac') or mn.startswith('v_pk_fmac') or mn.startswith('v_dot2c'): self.reads += R(0)
            if mn.startswith('v_add_co') or mn.startswith('v_addc_co'):
                self.writes = R(0) + R(1)
                self.reads = sum((R(i) for i in range(2, len(ops))), [])
        elif mn.startswith('s_load') or mn.startswith('s_memtime') or mn.startswith('s_memrealtime'):
            self.kind = 'smem'; self.writes = R(0); self.reads = R(1)
        elif mn.startswith('s_cmp') or mn.startswith('s_cbranch') or mn in ('s_branch', 's_barrier', 's_waitcnt', 's_endpgm', 's_setprio', 's_sleep'):
            self.kind = 'salu'; self.reads = sum((R(i) for i in range(len(ops))), [])
        elif mn.startswith('s_'):
            self.kind = 'salu'; self.writes = R(0)
            self.reads = sum((R(i) for i in range(1, len(ops))), [])
        else:
            raise ValueError('unknown instr ' + text)

def is_valu(i): return i.kind in ('valu', 'trans', 'perm', 'rdlane')

def required_ws(p, c):
    pw = set(p.writes); cr = set(c.reads); cw = set(c.writes)
    need = 0
    if is_valu(p):
        vw = {r for r in pw if r[0] != 's'}
        sw = {r for r in pw if r[0] == 's'}
        if c.kind == 'mfma' and vw & cr: need = max(need, 2)
        if c.kind == 'perm' and vw & cr: need = max(need, 2)
        if c.kind == 'rdlane' and vw & cr: need = max(need, 1)
        if p.kind == 'trans' and is_valu(c) and c.kind != 'trans' and vw & cr: need = max(need, 1)
        if p.kind == 'trans' and c.kind == 'trans' and vw & cr: need = max(need, 1)
        if sw & cr:
            if c.kind == 'vmem': need = max(need, 5)
            elif c.kind == 'rdlane': need = max(need, 4)
            elif is_valu(c): need = max(need, 2)
            elif c.kind == 'mfma': need = max(need, 4)
            elif c.kind == 'salu': need = max(need, 1)
    if p.kind == 'mfma':
        big = {4: 8, 8: 12}[p.passes]
        if c.kind == 'mfma':
            if pw & set(c.ab): need = max(need, big)
            if pw & set(c.srcc):
                if not (list(p.writes) == list(c.srcc) and p.passes == c.passes):
                    need = max(need, {4: 6, 8: 10}[p.passes])
            if (pw & cw) and not (pw & set(c.srcc)):
                need = max(need, big)
        else:
            if pw & (cr | cw): need = max(need, big)
        if is_valu(c) and set(p.srcc) & cw: need = max(need, {4: 3, 8: 7}[p.passes])
    if p.kind == 'salu' and ('s', 124) in pw and c.lds_dma: need = max(need, 1)
    if p.wide_store and set(p.ab) & cw: need = max(need, 2)
    return need

def check_hazards(seq, name=''):
    bad = 0
    for j, c in enumerate(seq):
        dist = 0
        for i in range(j - 1, max(-1, j - 24), -1):
            p = seq[i]
            need = required_ws(p, c)
            if need > dist:
                print(f'HAZARD[{name}]: need {need} have {dist}:\n   {p.text}\n   {c.text}')
                bad += 1
            dist += p.ws
            if dist >= 20: break
    return bad

class Prog:
    def __init__(self):
        self.out = []
        self.seq = []
        self.lds_q = []
        self.auto = True
    def raw(self, s): self.out.append(s)
    def label(self, l): self.out.append(l + ':')
    def comment(self, s): self.out.append('    ; ' + s)
    def _push(self, text):
        ins = Ins(text)
        self.out.append('    ' + text); self.seq.append(ins)
        return ins
    def I(self, text):
        ins = Ins(text)
        if self.auto:
            touched = set(ins.reads) | set(ins.writes)
            idx = -1
            for k, w in enumerate(self.lds_q):
                if w & touched: idx = k
            if idx >= 0:
                n = len(self.lds_q) - 1 - idx
                self._push(f's_waitcnt lgkmcnt({min(n,15)})')
                self.lds_q = self.lds_q[len(self.lds_q) - min(n, 15):] if n > 0 else []
            dist = 0; short = 0
            for p in reversed(self.seq[-24:]):
                need = required_ws(p, ins)
                short = max(short, need - dist)
                dist += p.ws
                if dist >= 20: break
            if short > 0:
                self._push(f's_nop {short-1}')
        self.out.append('    ' + text); self.seq.append(ins)
        if ins.kind in ('dsr', 'dsw'):
            self.lds_q.append(set(ins.writes))
        if ins.mn == 's_waitcnt' and 'lgkmcnt(0)' in text:
            self.lds_q = []
        return ins
    def text(self): return '\n'.join(self.out) + '\n'
```

```python
import sys, struct
from asmlib import *

def f32(x): return '0x%08x' % struct.unpack('<I', struct.pack('<f', x))[0]

NAME = 'standalone__mha_block_cached__near_ridge'
SCALE = (128 ** -0.5) * 1.4426950408889634
THR = 8.0

X_BYTES = 8*224*576*2
KV_BYTES = 8*32*512*128*2
W_BYTES = 576*4096*2
O_BYTES = 56*256*1024

def vr(a, n=1): return f'v{a}' if n == 1 else f'v[{a}:{a+n-1}]'
def sr(a, n=1): return f's{a}' if n == 1 else f's[{a}:{a+n-1}]'

def srd(p, dst, lo, nbytes):
    p.I(f's_mov_b32 s{dst}, s{lo}')
    p.I(f's_mov_b32 s{dst+1}, s{lo+1}')
    p.I(f's_mov_b32 s{dst+2}, {nbytes}')
    p.I(f's_mov_b32 s{dst+3}, 0x00020000')

def interleave(p, mfmas, fillers, lead=0):
    fi = 0
    for _ in range(lead):
        if fi < len(fillers): p.I(fillers[fi]); fi += 1
    n = len(mfmas)
    rem = len(fillers) - fi
    for k, m in enumerate(mfmas):
        p.I(m)
        tgt = fi + 0
        cnt = (rem * (k + 1)) // n - (rem * k) // n
        for _ in range(cnt):
            p.I(fillers[fi]); fi += 1
    assert fi == len(fillers)

def gen_k1():
    p = Prog()
    K1 = 'mha_attn_kernel'
    p.raw(f'.globl {K1}\n.p2align 8\n.type {K1},@function\n{K1}:')
    S_W, S_B, S_H, S_I = 3, 8, 9, 10
    SRD_X, SRD_WQ, SRD_K, SRD_V, SRD_WS = 32, 36, 40, 44, 48
    p.I('s_cmp_ge_u32 s2, 256')
    p.I('s_cbranch_scc1 K1_END')
    p.I('s_load_dwordx16 s[16:31], s[0:1], 0')
    p.I('v_lshrrev_b32 v1, 6, v0')
    p.I('v_and_b32 v0, 63, v0')
    p.I(f'v_readfirstlane_b32 s{S_W}, v1')
    p.I('s_and_b32 s4, s2, 7')
    p.I('s_lshr_b32 s5, s2, 3')
    p.I('s_and_b32 s6, s4, 1')
    p.I('s_lshl_b32 s6, s6, 2')
    p.I('s_and_b32 s7, s5, 3')
    p.I(f's_add_u32 s{S_B}, s6, s7')
    p.I('s_lshr_b32 s6, s4, 1')
    p.I('s_lshl_b32 s6, s6, 3')
    p.I('s_lshr_b32 s5, s5, 2')
    p.I(f's_add_u32 s{S_H}, s6, s5')
    p.I('s_lshl_b32 s11, s5, 1')
    p.I('s_mul_i32 s6, s7, 5')
    p.I('s_add_u32 s11, s11, s6')
    p.I('s_sub_u32 s6, s11, 18')
    p.I('s_cmp_ge_u32 s11, 18')
    p.I('s_cselect_b32 s11, s6, s11')
    p.I('s_waitcnt lgkmcnt(0)')
    srd(p, SRD_X, 16, X_BYTES)
    srd(p, SRD_K, 18, KV_BYTES)
    srd(p, SRD_V, 20, KV_BYTES)
    srd(p, SRD_WQ, 22, W_BYTES)
    srd(p, SRD_WS, 30, O_BYTES)
    p.I('v_and_b32 v2, 3, v0')
    p.I('v_bfe_u32 v3, v0, 2, 2')
    p.I('v_lshrrev_b32 v4, 4, v0')
    p.I('v_lshrrev_b32 v5, 5, v0')
    p.I('v_and_b32 v6, 31, v0')
    p.I(f's_cmp_eq_u32 s{S_W}, 7')
    p.I('s_cbranch_scc1 K1_LOADER')

    QB, STG, WOFF = 40960, 22528, 14336
    V_XDMA, V_WDMA, V_XL0, V_XL1, V_WL = 8, 9, 10, 11, 12
    V_XA0, V_XA1, V_WA = 13, 14, 15
    V_KL0, V_KL1, V_VL = 16, 17, 18
    V_KA0, V_KA1, V_VA = 19, 20, 21
    V_L0, V_L1, V_MX, V_T0, V_T1, V_T2, V_T3 = 22, 23, 24, 25, 26, 27, 28
    KF, VF, PP, QF, NEGM, S0, S1, OA = 40, 72, 104, 112, 144, 160, 176, 192
    XA, WA, XB, WB = 40, 44, 60, 64
    S_RD, S_LD, S_KS, S_XO, S_WO, S_T0, S_T1 = 52, 53, 11, 54, 55, 56, 57
    S_XBASE, S_WBASE = 58, 59
    p.I('v_lshrrev_b32 v7, 2, v0')
    p.I(f's_lshl_b32 s4, s{S_W}, 5')
    p.I('v_add_u32 v7, s4, v7')
    p.I('s_movk_i32 s5, 1152')
    p.I('v_mul_lo_u32 v7, v7, s5')
    p.I(f'v_xor_b32 v{V_XDMA}, v2, v4')
    p.I(f'v_lshl_add_u32 v{V_XDMA}, v{V_XDMA}, 4, v7')
    p.I('v_lshl_add_u32 v7, v4, 2, v2')
    p.I('v_lshlrev_b32 v7, 4, v7')
    p.I(f'v_lshl_add_u32 v{V_WDMA}, v3, 13, v7')
    p.I('v_add_u32 v7, s4, v6')
    p.I('v_lshlrev_b32 v7, 6, v7')
    p.I(f'v_xor_b32 v{V_XL0}, v5, v3')
    p.I(f'v_lshl_add_u32 v{V_XL0}, v{V_XL0}, 4, v7')
    p.I(f'v_xor_b32 v{V_XL1}, 32, v{V_XL0}')
    p.I('v_lshlrev_b32 v7, 11, v5')
    p.I('v_lshl_add_u32 v7, v3, 6, v7')
    p.I('v_and_b32 v29, 1, v4')
    p.I('v_lshl_add_u32 v7, v29, 5, v7')
    p.I('v_and_b32 v30, 1, v2')
    p.I(f'v_lshl_add_u32 v{V_WL}, v30, 4, v7')
    p.I('v_lshrrev_b32 v30, 1, v2')
    p.I(f'v_lshl_add_u32 v{V_WL}, v30, 3, v{V_WL}')
    p.I(f'v_add_u32 v{V_WL}, {WOFF}, v{V_WL}')
    p.I('v_lshlrev_b32 v7, 10, v5')
    p.I('v_lshl_add_u32 v7, v3, 6, v7')
    p.I('v_lshl_add_u32 v7, v29, 5, v7')
    p.I(f'v_lshl_add_u32 v{V_VL}, v2, 3, v7')
    p.I('v_lshrrev_b32 v7, 2, v6')
    p.I('v_lshlrev_b32 v7, 10, v7')
    p.I('v_lshl_add_u32 v7, v2, 6, v7')
    p.I(f'v_xor_b32 v{V_KL0}, v5, v3')
    p.I(f'v_lshl_add_u32 v{V_KL0}, v{V_KL0}, 4, v7')
    p.I(f'v_xor_b32 v{V_KL1}, 32, v{V_KL0}')
    p.I(f's_mul_i32 s{S_XBASE}, s{S_B}, 258048')
    p.I(f's_lshl_b32 s{S_WBASE}, s{S_H}, 8')
    p.I(f's_lshl_b32 s4, s{S_W}, 15')
    p.I(f's_add_u32 s{S_WBASE}, s{S_WBASE}, s4')

    def q_loads():
        p.I(f's_lshl_b32 s{S_XO}, s{S_KS}, 6')
        p.I(f's_add_u32 s{S_XO}, s{S_XO}, s{S_XBASE}')
        p.I(f's_lshl_b32 s{S_T0}, s{S_W}, 11')
        p.I(f's_add_u32 s{S_T0}, s{S_T0}, s{S_LD}')
        p.I(f's_mov_b32 m0, s{S_T0}')
        p.I(f's_add_u32 s{S_T1}, s{S_XO}, 18432')
        p.I(f'buffer_load_dwordx4 v{V_XDMA}, {sr(SRD_X,4)}, s{S_XO} offen lds')
        p.I(f's_add_u32 s{S_T0}, s{S_T0}, 1024')
        p.I(f's_mov_b32 m0, s{S_T0}')
        p.I(f's_lshl_b32 s{S_WO}, s{S_KS}, 18')
        p.I(f'buffer_load_dwordx4 v{V_XDMA}, {sr(SRD_X,4)}, s{S_T1} offen lds')
        p.I(f's_add_u32 s{S_WO}, s{S_WO}, s{S_WBASE}')
        p.I(f's_lshl_b32 s{S_T0}, s{S_W}, 10')
        p.I(f's_add_u32 s{S_T0}, s{S_T0}, s{S_LD}')
        p.I(f's_add_u32 s{S_T0}, s{S_T0}, {WOFF}')
        p.I(f's_mov_b32 m0, s{S_T0}')
        p.I(f's_cmp_lg_u32 s{S_W}, 0')
        p.I(f'buffer_load_dwordx4 v{V_WDMA}, {sr(SRD_WQ,4)}, s{S_WO} offen lds')
        lab = f'K1_QL{p.nlab}'; p.nlab += 1
        p.I(f's_cbranch_scc1 {lab}')
        p.I(f's_add_u32 s{S_T0}, s{S_T0}, 7168')
        p.I(f's_mov_b32 m0, s{S_T0}')
        p.I(f's_add_u32 s{S_WO}, s{S_WO}, {7*32768}')
        p.I(f'buffer_load_dwordx4 v{V_WDMA}, {sr(SRD_WQ,4)}, s{S_WO} offen lds')
        p.label(lab)
        p.I(f's_add_u32 s{S_KS}, s{S_KS}, 1')
        p.I(f's_cmp_eq_u32 s{S_KS}, 18')
        p.I(f's_cselect_b32 s{S_KS}, 0, s{S_KS}')
        p.I(f's_add_u32 s{S_LD}, s{S_LD}, {STG}')
        p.I(f's_cmp_eq_u32 s{S_LD}, {QB+4*STG}')
        p.I(f's_cselect_b32 s{S_LD}, {QB}, s{S_LD}')
    p.nlab = 0
    p.I(f's_mov_b32 s{S_LD}, {QB}')
    p.I(f's_mov_b32 s{S_RD}, {QB}')
    for _ in range(3): q_loads()
    for r in range(64): p.I(f'v_mov_b32 v{OA+r}, 0')
    for r in range(20): p.I(f'v_mov_b32 v{XB+r}, 0')
    p.I(f's_mov_b32 s{S_I}, 0')
    start_q = len(p.seq)
    p.label('K1_QLOOP')
    p.I(f's_cmp_ge_u32 s{S_I}, 16')
    p.I('s_cbranch_scc1 K1_QW0')
    p.I('s_waitcnt vmcnt(6)')
    p.I('s_branch K1_QW1')
    p.label('K1_QW0')
    p.I('s_waitcnt vmcnt(0)')
    p.label('K1_QW1')
    p.I('s_barrier')
    p.I(f'v_add_u32 v{V_XA0}, s{S_RD}, v{V_XL0}')
    p.I(f'v_add_u32 v{V_WA}, s{S_RD}, v{V_WL}')
    p.I(f'v_add_u32 v{V_XA1}, s{S_RD}, v{V_XL1}')
    def qreads(s, X, W):
        l = [f'ds_read_b128 {vr(X,4)}, v{V_XA1 if s else V_XA0}']
        for t in range(4):
            for u in range(2):
                l.append(f'ds_read_b64_tr_b16 {vr(W+4*t+2*u,2)}, v{V_WA} offset:{s*4096+u*1024+t*256}')
        return l
    def qmfma(X, W):
        return [f'v_mfma_f32_32x32x16_bf16 {vr(OA+16*t,16)}, {vr(W+4*t,4)}, {vr(X,4)}, {vr(OA+16*t,16)}' for t in range(4)]
    for i in qreads(0, XA, WA): p.I(i)
    for i in qmfma(XB, WB): p.I(i)
    p.I(f's_cmp_ge_u32 s{S_I}, 15')
    p.I('s_cbranch_scc1 K1_QNL')
    q_loads()
    p.label('K1_QNL')
    for i in qreads(1, XB, WB): p.I(i)
    for i in qmfma(XA, WA): p.I(i)
    p.I(f's_add_u32 s{S_RD}, s{S_RD}, {STG}')
    p.I(f's_cmp_eq_u32 s{S_RD}, {QB+4*STG}')
    p.I(f's_cselect_b32 s{S_RD}, {QB}, s{S_RD}')
    p.I(f's_add_u32 s{S_I}, s{S_I}, 1')
    p.I(f's_cmp_lt_u32 s{S_I}, 18')
    p.I('s_waitcnt lgkmcnt(0)')
    p.I('s_cbranch_scc1 K1_QLOOP')
    body = p.seq[start_q:]
    check_hazards(body + body, 'qloop')
    p.I('s_barrier')
    for i in qmfma(XB, WB): p.I(i)
    def kreads(dst, a0, a1, off):
        return [f'ds_read_b128 {vr(dst+4*s2,4)}, v{a1 if s2&1 else a0} offset:{off+(s2>>1)*256}' for s2 in range(8)]
    K0F = 80
    for i in kreads(K0F, V_KL0, V_KL1, 0): p.I(i)
    p.I(f's_mov_b32 s4, {f32(SCALE)}')
    for t in range(4):
        for r in range(16):
            p.I(f'v_mul_f32 v{OA+16*t+r}, s4, v{OA+16*t+r}')
        for r in range(8):
            p.I(f'v_cvt_pk_bf16_f32 v{QF+8*t+r}, v{OA+16*t+2*r}, v{OA+16*t+2*r+1}')
    for i in kreads(KF, V_KL0, V_KL1, 8192): p.I(i)
    for s2 in range(8):
        c = '0' if s2 == 0 else vr(S0, 16)
        p.I(f'v_mfma_f32_32x32x16_bf16 {vr(S0,16)}, {vr(K0F+4*s2,4)}, {vr(QF+4*s2,4)}, {c}')
    for r in range(64): p.I(f'v_mov_b32 v{OA+r}, 0')
    p.I(f'v_mov_b32 v{V_L0}, 0')
    p.I(f'v_mov_b32 v{V_L1}, 0')
    def maxtree(S):
        l = [f'v_max3_f32 v{V_MX}, v{S}, v{S+1}, v{S+2}',
             f'v_max3_f32 v{V_T0}, v{S+3}, v{S+4}, v{S+5}',
             f'v_max3_f32 v{V_MX}, v{V_MX}, v{S+6}, v{S+7}',
             f'v_max3_f32 v{V_T0}, v{V_T0}, v{S+8}, v{S+9}',
             f'v_max3_f32 v{V_MX}, v{V_MX}, v{S+10}, v{S+11}',
             f'v_max3_f32 v{V_T0}, v{V_T0}, v{S+12}, v{S+13}',
             f'v_max3_f32 v{V_MX}, v{V_MX}, v{S+14}, v{S+15}',
             f'v_max_f32 v{V_MX}, v{V_MX}, v{V_T0}']
        return l
    for i in maxtree(S0): p.I(i)
    p.I(f'v_mov_b32 v{V_T0}, v{V_MX}')
    p.I(f'v_permlane32_swap_b32 v{V_MX}, v{V_T0}')
    p.I(f'v_max_f32 v{V_MX}, v{V_MX}, v{V_T0}')
    for r in range(16):
        p.I(f'v_sub_f32 v{S0+r}, v{S0+r}, v{V_MX}')
        p.I(f'v_sub_f32 v{NEGM+r}, 0, v{V_MX}')
    p.I(f's_mov_b32 s{S_I}, 0')
    S_KB, S_VB, S_THR = 52, 53, 54
    p.I(f's_mov_b32 s{S_KB}, 16384')
    p.I(f's_mov_b32 s{S_VB}, {163840-16384}')
    p.I(f's_mov_b32 s{S_THR}, {f32(THR)}')
    p.I('s_waitcnt lgkmcnt(0)')

    rare = []
    def phaseA(Scur, Snext, voff, do_qk):
        m = []
        if do_qk:
            for s2 in range(8):
                c = vr(NEGM, 16) if s2 == 0 else vr(Snext, 16)
                m.append(f'v_mfma_f32_32x32x16_bf16 {vr(Snext,16)}, {vr(KF+4*s2,4)}, {vr(QF+4*s2,4)}, {c}')
        rd = []
        for s in range(2):
            for t in range(4):
                for u in range(2):
                    rd.append(f'ds_read_b64_tr_b16 {vr(VF+16*s+4*t+2*u,2)}, v{V_VA} offset:{voff+s*4096+u*2048+t*256}')
        f = []
        for k in range(8):
            f.append(rd[2*k]); f.append(rd[2*k+1])
            f.append(f'v_exp_f32 v{Scur+2*k}, v{Scur+2*k}')
            f.append(f'v_exp_f32 v{Scur+2*k+1}, v{Scur+2*k+1}')
            if k > 0:
                f.append(f'v_cvt_pk_bf16_f32 v{PP+k-1}, v{Scur+2*k-2}, v{Scur+2*k-1}')
        f.append(f'v_cvt_pk_bf16_f32 v{PP+7}, v{Scur+14}, v{Scur+15}')
        if do_qk: interleave(p, m, f)
        else:
            for i in f: p.I(i)
    def phaseB(Scur, Snext, koff, do_k, do_chk):
        m = []
        for s in range(2):
            for t in range(4):
                m.append(f'v_mfma_f32_32x32x16_bf16 {vr(OA+16*t,16)}, {vr(VF+16*s+4*t,4)}, {vr(PP+4*s,4)}, {vr(OA+16*t,16)}')
        f = []
        rd = kreads(KF, V_KA0, V_KA1, koff) if do_k else []
        adds = [f'v_add_f32 v{V_L0 + (r&1)}, v{V_L0 + (r&1)}, v{Scur+r}' for r in range(16)]
        for k in range(8):
            if rd: f.append(rd[k])
            f.append(adds[2*k]); f.append(adds[2*k+1])
        f = []
        for k in range(8):
            if rd and k < 4: f += [rd[2*k], rd[2*k+1]]
            f += [adds[2*k], adds[2*k+1]]
        if do_chk: f += maxtree(Snext)
        interleave(p, m, f)
        if do_chk:
            lab = f'K1_RARE{len(rare)}'; ret = f'K1_RET{len(rare)}'
            rare.append((lab, ret, Snext))
            p.I(f'v_cmp_lt_f32 vcc, s{S_THR}, v{V_MX}')
            p.I(f's_cbranch_vccnz {lab}')
            p.label(ret)
    def body(last):
        p.I('s_barrier')
        p.I(f'v_add_u32 v{V_VA}, s{S_VB}, v{V_VL}')
        if not last:
            p.I(f'v_add_u32 v{V_KA0}, s{S_KB}, v{V_KL0}')
            p.I(f'v_add_u32 v{V_KA1}, s{S_KB}, v{V_KL1}')
        phaseA(S0, S1, 8192, True)
        phaseB(S0, S1, 0, not last, True)
        phaseA(S1, S0, 0, not last)
        phaseB(S1, S0, 8192, not last, not last)
    st = len(p.seq)
    p.label('K1_ALOOP')
    body(False)
    p.I(f's_add_u32 s{S_KB}, s{S_KB}, 16384')
    p.I(f's_cmp_eq_u32 s{S_KB}, 81920')
    p.I(f's_cselect_b32 s{S_KB}, 0, s{S_KB}')
    p.I(f's_sub_u32 s{S_VB}, s{S_VB}, 16384')
    p.I(f's_cmp_eq_u32 s{S_VB}, {81920-16384}')
    p.I(f's_cselect_b32 s{S_VB}, {163840-16384}, s{S_VB}')
    p.I(f's_add_u32 s{S_I}, s{S_I}, 1')
    p.I(f's_cmp_lt_u32 s{S_I}, 7')
    p.I('s_waitcnt lgkmcnt(0)')
    p.I('s_cbranch_scc1 K1_ALOOP')
    b = p.seq[st:]
    check_hazards(b + b, 'aloop')
    body(True)
    p.I(f'v_add_f32 v{V_L0}, v{V_L0}, v{V_L1}')
    p.I(f'v_mov_b32 v{V_T0}, v{V_L0}')
    p.I(f'v_permlane32_swap_b32 v{V_L0}, v{V_T0}')
    p.I(f'v_add_f32 v{V_L0}, v{V_L0}, v{V_T0}')
    p.I(f'v_rcp_f32 v{V_L0}, v{V_L0}')
    p.I(f's_mul_i32 s4, s{S_B}, 7')
    p.I(f's_add_u32 s4, s4, s{S_W}')
    p.I('s_lshl_b32 s4, s4, 18')
    p.I(f's_lshl_b32 s5, s{S_H}, 13')
    p.I('s_add_u32 s4, s4, s5')
    p.I('s_add_u32 s5, s4, 4096')
    p.I(f'v_lshlrev_b32 v{V_T1}, 4, v0')
    for t in range(4):
        for r in range(16):
            p.I(f'v_mul_f32 v{OA+16*t+r}, v{OA+16*t+r}, v{V_L0}')
        for r in range(8):
            p.I(f'v_cvt_pk_bf16_f32 v{QF+8*t+r}, v{OA+16*t+2*r}, v{OA+16*t+2*r+1}')
        for s in range(2):
            f = 2*t+s
            p.I(f'buffer_store_dwordx4 {vr(QF+8*t+4*s,4)}, v{V_T1}, {sr(SRD_WS,4)}, s{4 if f<4 else 5} offen offset:{(f&3)*1024}')
    p.I('s_endpgm')
    for lab, ret, S in rare:
        p.label(lab)
        p.I('s_nop 15')
        p.I('s_nop 15')
        p.I(f'v_mov_b32 v{V_T0}, v{V_MX}')
        p.I(f'v_permlane32_swap_b32 v{V_MX}, v{V_T0}')
        p.I(f'v_max3_f32 v{V_MX}, v{V_MX}, v{V_T0}, 0')
        p.I(f'v_exp_f32 v{V_T0}, -v{V_MX}')
        for r in range(16):
            p.I(f'v_sub_f32 v{S+r}, v{S+r}, v{V_MX}')
            p.I(f'v_sub_f32 v{NEGM+r}, v{NEGM+r}, v{V_MX}')
        p.I(f'v_mul_f32 v{V_L0}, v{V_L0}, v{V_T0}')
        p.I(f'v_mul_f32 v{V_L1}, v{V_L1}, v{V_T0}')
        for r in range(64):
            p.I(f'v_mul_f32 v{OA+r}, v{OA+r}, v{V_T0}')
        p.I('s_nop 3')
        p.I(f's_branch {ret}')

    p.label('K1_LOADER')
    p.lds_q = []
    VP = 8
    for j in range(4):
        p.I(f'v_xor_b32 v7, {j}, v2')
        p.I('v_lshl_add_u32 v7, v4, 2, v7')
        p.I('v_lshlrev_b32 v7, 4, v7')
        p.I(f'v_lshl_add_u32 v{VP+j}, v3, 8, v7')
    p.I(f's_lshl_b32 s4, s{S_B}, 5')
    p.I(f's_add_u32 s4, s4, s{S_H}')
    p.I('s_lshl_b32 s12, s4, 17')
    def ld(kind, n):
        if kind == 'K': lds = (n % 10) * 8192
        else: lds = 163840 - 8192 * (1 + n % 10)
        for half in range(2):
            p.I(f's_add_u32 s13, s12, {n*8192 + half*4096}')
            p.I(f's_mov_b32 m0, {lds + half*4096}')
            for q in range(4):
                v = VP + q if kind == 'K' else VP
                sd = SRD_K if kind == 'K' else SRD_V
                p.I(f'buffer_load_dwordx4 v{v}, {sr(sd,4)}, s13 offen offset:{q*1024} lds')
    order = [('K', 0), ('K', 1)]
    for i in range(8):
        order.append(('V', 2*i))
        if 2*i+2 < 16: order.append(('K', 2*i+2))
        order.append(('V', 2*i+1))
        if 2*i+3 < 16: order.append(('K', 2*i+3))
    for o in order[:7]: ld(*o)
    for i in range(18):
        p.I('s_barrier')
        if i == 8:
            for o in order[7:9]: ld(*o)
    p.I('s_waitcnt vmcnt(56)')
    p.I('s_barrier')
    for o in order[9:14]: ld(*o)
    p.I('s_waitcnt vmcnt(63)')
    p.I('s_barrier')
    pos = 14
    for i in range(1, 8):
        nxt = len(order[2+4*(i+1): 2+4*(i+2)]) * 8
        p.I(f's_waitcnt vmcnt({nxt})')
        for o in order[2+4*(i+2): 2+4*(i+3)]: ld(*o)
        p.I('s_barrier')
    p.label('K1_END')
    p.I('s_endpgm')
    check_hazards(p.seq, 'k1')
    return p.text(), K1

def gen_k2():
    p = Prog()
    K2 = 'mha_oproj_kernel'
    p.raw(f'.globl {K2}\n.p2align 8\n.type {K2},@function\n{K2}:')
    D = 8
    S_W = 3
    SRD_WO, SRD_O, SRD_OUT = 32, 36, 40
    p.I('s_cmp_ge_u32 s2, 256')
    p.I('s_cbranch_scc1 K2_END')
    p.I('s_and_b32 s4, s2, 7')
    p.I('s_lshr_b32 s5, s2, 3')
    p.I('s_lshl_b32 s4, s4, 5')
    p.I('s_add_u32 s4, s4, s5')
    p.I('s_cmp_ge_u32 s4, 252')
    p.I('s_cbranch_scc1 K2_END')
    p.I('s_load_dwordx16 s[16:31], s[0:1], 0')
    p.I('s_mul_i32 s5, s4, 57')
    p.I('s_lshr_b32 s8, s5, 9')
    p.I('s_mul_i32 s5, s8, 9')
    p.I('s_sub_u32 s9, s4, s5')
    p.I('v_lshrrev_b32 v1, 6, v0')
    p.I('v_and_b32 v0, 63, v0')
    p.I(f'v_readfirstlane_b32 s{S_W}, v1')
    p.I('v_and_b32 v2, 3, v0')
    p.I('v_bfe_u32 v3, v0, 2, 2')
    p.I('v_bfe_u32 v4, v0, 4, 1')
    p.I('v_lshrrev_b32 v5, 5, v0')
    V_OD, V_WD, V_RA = 8, 9, 10
    p.I(f'v_lshlrev_b32 v{V_OD}, 4, v0')
    p.I('v_lshl_add_u32 v6, v5, 2, v3')
    p.I('s_movk_i32 s5, 1152')
    p.I('v_mul_lo_u32 v6, v6, s5')
    p.I('v_lshl_add_u32 v7, v4, 2, v2')
    p.I(f'v_lshl_add_u32 v{V_WD}, v7, 4, v6')
    p.I('v_lshlrev_b32 v6, 9, v5')
    p.I('v_lshl_add_u32 v6, v3, 6, v6')
    p.I('v_and_b32 v7, 1, v2')
    p.I('v_lshl_add_u32 v6, v7, 5, v6')
    p.I('v_lshl_add_u32 v6, v4, 4, v6')
    p.I('v_lshrrev_b32 v7, 1, v2')
    p.I('v_lshl_add_u32 v6, v7, 3, v6')
    p.I(f's_lshl_b32 s10, s{S_W}, 14')
    p.I(f'v_add_u32 v{V_RA}, s10, v6')
    p.I('s_waitcnt lgkmcnt(0)')
    srd(p, SRD_WO, 24, W_BYTES)
    srd(p, SRD_O, 30, O_BYTES)
    srd(p, SRD_OUT, 26, X_BYTES)
    S_O0, S_O1, S_WO, S_T = 44, 45, 46, 47
    p.I(f's_lshl_b32 s{S_O0}, s8, 19')
    p.I(f's_lshl_b32 s4, s{S_W}, 16')
    p.I(f's_add_u32 s{S_O0}, s{S_O0}, s4')
    p.I(f's_add_u32 s{S_O1}, s{S_O0}, {256*1024}')
    p.I(f's_mul_i32 s{S_WO}, s{S_W}, {1024*1152}')
    p.I('s_lshl_b32 s4, s9, 7')
    p.I(f's_add_u32 s{S_WO}, s{S_WO}, s4')
    OF, AF, ACC = 16, 80, 112
    def loads(j):
        sl = j % D
        p.I(f'buffer_load_dwordx4 {vr(OF+8*sl,4)}, v{V_OD}, {sr(SRD_O,4)}, s{S_O0} offen')
        p.I(f's_add_u32 s{S_T}, s10, {sl*2048}')
        p.I(f'buffer_load_dwordx4 {vr(OF+8*sl+4,4)}, v{V_OD}, {sr(SRD_O,4)}, s{S_O1} offen')
        p.I(f's_mov_b32 m0, s{S_T}')
        p.I(f's_add_u32 s{S_O0}, s{S_O0}, 1024')
        p.I(f'buffer_load_dwordx4 v{V_WD}, {sr(SRD_WO,4)}, s{S_WO} offen lds')
        p.I(f's_add_u32 s{S_T}, s{S_T}, 1024')
        p.I(f's_mov_b32 m0, s{S_T}')
        p.I(f's_add_u32 s{S_WO}, s{S_WO}, {8*1152}')
        p.I(f'buffer_load_dwordx4 v{V_WD}, {sr(SRD_WO,4)}, s{S_WO} offen lds')
        p.I(f's_add_u32 s{S_WO}, s{S_WO}, {8*1152}')
        p.I(f's_add_u32 s{S_O1}, s{S_O1}, 1024')
    def areads(j):
        sl = j % D; a = AF + 8*(j % 2)
        for tn in range(2):
            for u in range(2):
                p.I(f'ds_read_b64_tr_b16 {vr(a+4*tn+2*u,2)}, v{V_RA} offset:{sl*2048+u*1024+tn*256}')
    def mf(j):
        sl = j % D; a = AF + 8*(j % 2)
        for tq in range(2):
            for tn in range(2):
                c = ACC + 16*(tn + 2*tq)
                p.I(f'v_mfma_f32_32x32x16_bf16 {vr(c,16)}, {vr(a+4*tn,4)}, {vr(OF+8*sl+4*tq,4)}, {vr(c,16)}')
    for j in range(D): loads(j)
    for r in range(64): p.I(f'v_mov_b32 v{ACC+r}, 0')
    p.I(f's_waitcnt vmcnt({4*(D-1)})')
    areads(0)
    p.I('s_mov_b32 s11, 0')
    st = len(p.seq)
    p.label('K2_LOOP')
    for j in range(D):
        p.I(f's_waitcnt vmcnt({4*(D-2)})')
        areads(j+1)
        mf(j)
        loads(j)
    p.I('s_add_u32 s11, s11, 1')
    p.I(f's_cmp_lt_u32 s11, {64//D - 1}')
    p.I('s_cbranch_scc1 K2_LOOP')
    b = p.seq[st:]
    check_hazards(b + b, 'k2loop')
    for j in range(D):
        if j + 1 < D:
            p.I(f's_waitcnt vmcnt({4*(D-2-j)})')
            areads(j+1)
        mf(j)
    p.I('s_waitcnt lgkmcnt(0)')
    p.I('s_barrier')
    p.I(f's_lshl_b32 s4, s{S_W}, 12')
    p.I(f'v_add_u32 v11, s4, v{V_OD}')
    for o in range(4):
        for g in range(4):
            p.I(f'ds_write_b128 v11, {vr(ACC+16*o+4*g,4)} offset:{o*16384+g*1024}')
    p.I('s_waitcnt lgkmcnt(0)')
    p.I('s_barrier')
    p.I(f'v_add_u32 v11, s10, v{V_OD}')
    for k in range(4):
        for g in range(4):
            p.I(f'ds_read_b128 {vr(ACC+16*k+4*g,4)}, v11 offset:{k*4096+g*1024}')
    for r in range(16):
        p.I(f'v_add_f32 v{ACC+r}, v{ACC+r}, v{ACC+16+r}')
        p.I(f'v_add_f32 v{ACC+32+r}, v{ACC+32+r}, v{ACC+48+r}')
    for r in range(16):
        p.I(f'v_add_f32 v{ACC+r}, v{ACC+r}, v{ACC+32+r}')
    for r in range(8):
        p.I(f'v_cvt_pk_bf16_f32 v{OF+r}, v{ACC+2*r}, v{ACC+2*r+1}')
    p.I('v_and_b32 v6, 31, v0')
    p.I('s_movk_i32 s5, 1152')
    p.I('v_mul_lo_u32 v6, v6, s5')
    p.I('v_lshl_add_u32 v6, v5, 5, v6')
    p.I(f's_lshr_b32 s4, s{S_W}, 1')
    p.I('s_lshl_b32 s5, s8, 1')
    p.I('s_add_u32 s4, s4, s5')
    p.I(f's_mul_i32 s4, s4, {32*1152}')
    p.I('s_lshl_b32 s5, s9, 7')
    p.I('s_add_u32 s4, s4, s5')
    p.I(f's_and_b32 s5, s{S_W}, 1')
    p.I('s_lshl_b32 s5, s5, 6')
    p.I('s_add_u32 s4, s4, s5')
    p.I(f'buffer_store_dwordx4 {vr(OF,4)}, v6, {sr(SRD_OUT,4)}, s4 offen')
    p.I(f'buffer_store_dwordx4 {vr(OF+4,4)}, v6, {sr(SRD_OUT,4)}, s4 offen offset:16')
    p.label('K2_END')
    p.I('s_endpgm')
    check_hazards(p.seq, 'k2')
    return p.text(), K2

def kd(name, vgpr, sgpr=96):
    return f'''.p2align 6
.amdhsa_kernel {name}
  .amdhsa_next_free_vgpr {vgpr}
  .amdhsa_next_free_sgpr {sgpr}
  .amdhsa_accum_offset {(vgpr+3)//4*4}
  .amdhsa_group_segment_fixed_size 0
  .amdhsa_kernarg_size 64
  .amdhsa_user_sgpr_count 2
  .amdhsa_user_sgpr_kernarg_segment_ptr 1
  .amdhsa_system_sgpr_workgroup_id_x 1
.end_amdhsa_kernel
'''

def main(out):
    t1, k1 = gen_k1()
    t2, k2 = gen_k2()
    hdr = open('cdna_kernels/' + NAME + '.s.ref').read().split('; Override')[0]
    s = hdr
    s += f'; @launch kernel={k1} grid=(256,1,1) block=(512,1,1) lds=163840\n'
    s += f'; @launch kernel={k2} grid=(256,1,1) block=(256,1,1) lds=65536\n'
    s += '.amdgcn_target "amdgcn-amd-amdhsa--gfx950"\n.text\n'
    s += t1 + t2
    s += '.section .rodata,"a"\n'
    s += kd(k1, 256) + kd(k2, 176)
    open(out, 'w').write(s)

if __name__ == '__main__':
    main(sys.argv[1] if len(sys.argv) > 1 else 'cdna_kernels/' + NAME + '.s')
```

```python
import sys, struct
from asmlib import *

def f32(x): return '0x%08x' % struct.unpack('<I', struct.pack('<f', x))[0]

NAME = 'standalone__mha_block_cached__near_ridge'
SCALE = (128 ** -0.5) * 1.4426950408889634
THR = 8.0

X_BYTES = 8*224*576*2
KV_BYTES = 8*32*512*128*2
W_BYTES = 576*4096*2
O_BYTES = 56*256*1024

def vr(a, n=1): return f'v{a}' if n == 1 else f'v[{a}:{a+n-1}]'
def sr(a, n=1): return f's{a}' if n == 1 else f's[{a}:{a+n-1}]'

def srd(p, dst, lo, nbytes):
    p.I(f's_mov_b32 s{dst}, s{lo}')
    p.I(f's_mov_b32 s{dst+1}, s{lo+1}')
    p.I(f's_mov_b32 s{dst+2}, {nbytes}')
    p.I(f's_mov_b32 s{dst+3}, 0x00020000')

STAMP = False
def stamp(p, k, real=False):
    if not STAMP: return
    p.I('s_waitcnt lgkmcnt(0)')
    p.I(f's_memrealtime s[{64+2*k}:{65+2*k}]' if real else f's_memtime s[{64+2*k}:{65+2*k}]')
    p.I('s_waitcnt lgkmcnt(0)')
def stamp_flush(p, n, wave_sreg, region, nw):
    if not STAMP: return
    p.I(f's_add_u32 s60, s30, {(64<<20) + region}')
    p.I('s_addc_u32 s61, s31, 0')
    p.I('s_mov_b32 s62, 0x100000')
    p.I('s_mov_b32 s63, 0x00020000')
    p.I(f's_mul_i32 s4, s2, {nw}')
    p.I(f's_add_u32 s4, s4, s{wave_sreg}')
    p.I('s_lshl_b32 s4, s4, 6')
    p.I('v_mov_b32 v1, 0')
    for k in range(n):
        p.I(f'v_mov_b32 v2, s{64+2*k}')
        p.I(f'buffer_store_dword v2, v1, s[60:63], s4 offen offset:{4*k}')

def interleave(p, mfmas, fillers, lead=0):
    fi = 0
    for _ in range(lead):
        if fi < len(fillers): p.I(fillers[fi]); fi += 1
    n = len(mfmas)
    rem = len(fillers) - fi
    for k, m in enumerate(mfmas):
        p.I(m)
        tgt = fi + 0
        cnt = (rem * (k + 1)) // n - (rem * k) // n
        for _ in range(cnt):
            p.I(fillers[fi]); fi += 1
    assert fi == len(fillers)

def gen_k1():
    p = Prog()
    K1 = 'mha_attn_kernel'
    p.raw(f'.globl {K1}\n.p2align 8\n.type {K1},@function\n{K1}:')
    S_W, S_B, S_H, S_I = 3, 8, 9, 10
    SRD_X, SRD_WQ, SRD_K, SRD_V, SRD_WS = 32, 36, 40, 44, 48
    p.I('s_cmp_ge_u32 s2, 256')
    p.I('s_cbranch_scc1 K1_END')
    p.I('s_load_dwordx16 s[16:31], s[0:1], 0')
    p.I('v_lshrrev_b32 v1, 6, v0')
    p.I('v_and_b32 v0, 63, v0')
    p.I(f'v_readfirstlane_b32 s{S_W}, v1')
    p.I('s_and_b32 s4, s2, 7')
    p.I('s_lshr_b32 s5, s2, 3')
    p.I('s_and_b32 s6, s4, 1')
    p.I('s_lshl_b32 s6, s6, 2')
    p.I('s_and_b32 s7, s5, 3')
    p.I(f's_add_u32 s{S_B}, s6, s7')
    p.I('s_lshr_b32 s6, s4, 1')
    p.I('s_lshl_b32 s6, s6, 3')
    p.I('s_lshr_b32 s5, s5, 2')
    p.I(f's_add_u32 s{S_H}, s6, s5')
    p.I('s_lshl_b32 s11, s5, 1')
    p.I('s_mul_i32 s6, s7, 5')
    p.I('s_add_u32 s11, s11, s6')
    p.I('s_sub_u32 s6, s11, 18')
    p.I('s_cmp_ge_u32 s11, 18')
    p.I('s_cselect_b32 s11, s6, s11')
    p.I('s_waitcnt lgkmcnt(0)')
    srd(p, SRD_X, 16, X_BYTES)
    srd(p, SRD_K, 18, KV_BYTES)
    srd(p, SRD_V, 20, KV_BYTES)
    srd(p, SRD_WQ, 22, W_BYTES)
    srd(p, SRD_WS, 30, O_BYTES)
    stamp(p, 0, True)
    stamp(p, 1)
    p.I('v_and_b32 v2, 3, v0')
    p.I('v_bfe_u32 v3, v0, 2, 2')
    p.I('v_lshrrev_b32 v4, 4, v0')
    p.I('v_lshrrev_b32 v5, 5, v0')
    p.I('v_and_b32 v6, 31, v0')
    p.I(f's_cmp_eq_u32 s{S_W}, 7')
    p.I('s_cbranch_scc1 K1_LOADER')

    QB, STG, WOFF = 40960, 22528, 14336
    V_XDMA, V_WDMA, V_XL0, V_XL1, V_WL = 8, 9, 10, 11, 12
    V_XA0, V_XA1, V_WA = 13, 14, 15
    V_KL0, V_KL1, V_VL = 16, 17, 18
    V_KA0, V_KA1, V_VA = 19, 20, 21
    V_L0, V_L1, V_MX, V_T0, V_T1, V_T2, V_T3 = 22, 23, 24, 25, 26, 27, 28
    KF, VF, PP, QF, NEGM, S0, S1, OA = 40, 72, 104, 112, 144, 160, 176, 192
    XA, WA, XB, WB = 40, 44, 60, 64
    S_RD, S_LD, S_KS, S_XO, S_WO, S_T0, S_T1 = 52, 53, 11, 54, 55, 56, 57
    S_XBASE, S_WBASE = 58, 59
    p.I('v_lshrrev_b32 v7, 2, v0')
    p.I(f's_lshl_b32 s4, s{S_W}, 5')
    p.I('v_add_u32 v7, s4, v7')
    p.I('s_movk_i32 s5, 1152')
    p.I('v_mul_lo_u32 v7, v7, s5')
    p.I(f'v_xor_b32 v{V_XDMA}, v2, v4')
    p.I(f'v_lshl_add_u32 v{V_XDMA}, v{V_XDMA}, 4, v7')
    p.I('v_lshl_add_u32 v7, v4, 2, v2')
    p.I('v_lshlrev_b32 v7, 4, v7')
    p.I(f'v_lshl_add_u32 v{V_WDMA}, v3, 13, v7')
    p.I('v_add_u32 v7, s4, v6')
    p.I('v_lshlrev_b32 v7, 6, v7')
    p.I(f'v_xor_b32 v{V_XL0}, v5, v3')
    p.I(f'v_lshl_add_u32 v{V_XL0}, v{V_XL0}, 4, v7')
    p.I(f'v_xor_b32 v{V_XL1}, 32, v{V_XL0}')
    p.I('v_lshlrev_b32 v7, 11, v5')
    p.I('v_lshl_add_u32 v7, v3, 6, v7')
    p.I('v_and_b32 v29, 1, v4')
    p.I('v_lshl_add_u32 v7, v29, 5, v7')
    p.I('v_and_b32 v30, 1, v2')
    p.I(f'v_lshl_add_u32 v{V_WL}, v30, 4, v7')
    p.I('v_lshrrev_b32 v30, 1, v2')
    p.I(f'v_lshl_add_u32 v{V_WL}, v30, 3, v{V_WL}')
    p.I(f'v_add_u32 v{V_WL}, {WOFF}, v{V_WL}')
    p.I('v_lshlrev_b32 v7, 10, v5')
    p.I('v_lshl_add_u32 v7, v3, 6, v7')
    p.I('v_lshl_add_u32 v7, v29, 5, v7')
    p.I(f'v_lshl_add_u32 v{V_VL}, v2, 3, v7')
    p.I('v_lshrrev_b32 v7, 2, v6')
    p.I('v_lshlrev_b32 v7, 10, v7')
    p.I('v_lshl_add_u32 v7, v2, 6, v7')
    p.I(f'v_xor_b32 v{V_KL0}, v5, v3')
    p.I(f'v_lshl_add_u32 v{V_KL0}, v{V_KL0}, 4, v7')
    p.I(f'v_xor_b32 v{V_KL1}, 32, v{V_KL0}')
    p.I(f's_mul_i32 s{S_XBASE}, s{S_B}, 258048')
    p.I(f's_lshl_b32 s{S_WBASE}, s{S_H}, 8')
    p.I(f's_lshl_b32 s4, s{S_W}, 15')
    p.I(f's_add_u32 s{S_WBASE}, s{S_WBASE}, s4')

    def q_loads():
        p.I(f's_lshl_b32 s{S_XO}, s{S_KS}, 6')
        p.I(f's_add_u32 s{S_XO}, s{S_XO}, s{S_XBASE}')
        p.I(f's_lshl_b32 s{S_T0}, s{S_W}, 11')
        p.I(f's_add_u32 s{S_T0}, s{S_T0}, s{S_LD}')
        p.I(f's_mov_b32 m0, s{S_T0}')
        p.I(f's_add_u32 s{S_T1}, s{S_XO}, 18432')
        p.I(f'buffer_load_dwordx4 v{V_XDMA}, {sr(SRD_X,4)}, s{S_XO} offen lds')
        p.I(f's_add_u32 s{S_T0}, s{S_T0}, 1024')
        p.I(f's_mov_b32 m0, s{S_T0}')
        p.I(f's_lshl_b32 s{S_WO}, s{S_KS}, 18')
        p.I(f'buffer_load_dwordx4 v{V_XDMA}, {sr(SRD_X,4)}, s{S_T1} offen lds')
        p.I(f's_add_u32 s{S_WO}, s{S_WO}, s{S_WBASE}')
        p.I(f's_lshl_b32 s{S_T0}, s{S_W}, 10')
        p.I(f's_add_u32 s{S_T0}, s{S_T0}, s{S_LD}')
        p.I(f's_add_u32 s{S_T0}, s{S_T0}, {WOFF}')
        p.I(f's_mov_b32 m0, s{S_T0}')
        p.I(f's_cmp_lg_u32 s{S_W}, 0')
        p.I(f'buffer_load_dwordx4 v{V_WDMA}, {sr(SRD_WQ,4)}, s{S_WO} offen lds')
        lab = f'K1_QL{p.nlab}'; p.nlab += 1
        p.I(f's_cbranch_scc1 {lab}')
        p.I(f's_add_u32 s{S_T0}, s{S_T0}, 7168')
        p.I(f's_mov_b32 m0, s{S_T0}')
        p.I(f's_add_u32 s{S_WO}, s{S_WO}, {7*32768}')
        p.I(f'buffer_load_dwordx4 v{V_WDMA}, {sr(SRD_WQ,4)}, s{S_WO} offen lds')
        p.label(lab)
        p.I(f's_add_u32 s{S_KS}, s{S_KS}, 1')
        p.I(f's_cmp_eq_u32 s{S_KS}, 18')
        p.I(f's_cselect_b32 s{S_KS}, 0, s{S_KS}')
        p.I(f's_add_u32 s{S_LD}, s{S_LD}, {STG}')
        p.I(f's_cmp_eq_u32 s{S_LD}, {QB+4*STG}')
        p.I(f's_cselect_b32 s{S_LD}, {QB}, s{S_LD}')
    p.nlab = 0
    p.I(f's_mov_b32 s{S_LD}, {QB}')
    p.I(f's_mov_b32 s{S_RD}, {QB}')
    for _ in range(3): q_loads()
    for r in range(64): p.I(f'v_mov_b32 v{OA+r}, 0')
    for r in range(20): p.I(f'v_mov_b32 v{XB+r}, 0')
    p.I(f's_mov_b32 s{S_I}, 0')
    if STAMP: p.I('s_waitcnt vmcnt(6)')
    stamp(p, 2)
    start_q = len(p.seq)
    p.label('K1_QLOOP')
    p.I(f's_cmp_ge_u32 s{S_I}, 16')
    p.I('s_cbranch_scc1 K1_QW0')
    p.I('s_waitcnt vmcnt(6)')
    p.I('s_branch K1_QW1')
    p.label('K1_QW0')
    p.I('s_waitcnt vmcnt(0)')
    p.label('K1_QW1')
    p.I('s_barrier')
    p.I(f'v_add_u32 v{V_XA0}, s{S_RD}, v{V_XL0}')
    p.I(f'v_add_u32 v{V_WA}, s{S_RD}, v{V_WL}')
    p.I(f'v_add_u32 v{V_XA1}, s{S_RD}, v{V_XL1}')
    def qreads(s, X, W):
        l = [f'ds_read_b128 {vr(X,4)}, v{V_XA1 if s else V_XA0}']
        for t in range(4):
            for u in range(2):
                l.append(f'ds_read_b64_tr_b16 {vr(W+4*t+2*u,2)}, v{V_WA} offset:{s*4096+u*1024+t*256}')
        return l
    def qmfma(X, W):
        return [f'v_mfma_f32_32x32x16_bf16 {vr(OA+16*t,16)}, {vr(W+4*t,4)}, {vr(X,4)}, {vr(OA+16*t,16)}' for t in range(4)]
    for i in qreads(0, XA, WA): p.I(i)
    for i in qmfma(XB, WB): p.I(i)
    p.I(f's_cmp_ge_u32 s{S_I}, 15')
    p.I('s_cbranch_scc1 K1_QNL')
    q_loads()
    p.label('K1_QNL')
    for i in qreads(1, XB, WB): p.I(i)
    for i in qmfma(XA, WA): p.I(i)
    p.I(f's_add_u32 s{S_RD}, s{S_RD}, {STG}')
    p.I(f's_cmp_eq_u32 s{S_RD}, {QB+4*STG}')
    p.I(f's_cselect_b32 s{S_RD}, {QB}, s{S_RD}')
    p.I(f's_add_u32 s{S_I}, s{S_I}, 1')
    p.I(f's_cmp_lt_u32 s{S_I}, 18')
    p.I('s_waitcnt lgkmcnt(0)')
    p.I('s_cbranch_scc1 K1_QLOOP')
    body = p.seq[start_q:]
    check_hazards(body + body, 'qloop')
    stamp(p, 3)
    p.I('s_barrier')
    for i in qmfma(XB, WB): p.I(i)
    def kreads(dst, a0, a1, off):
        return [f'ds_read_b128 {vr(dst+4*s2,4)}, v{a1 if s2&1 else a0} offset:{off+(s2>>1)*256}' for s2 in range(8)]
    K0F = 80
    for i in kreads(K0F, V_KL0, V_KL1, 0): p.I(i)
    p.I(f's_mov_b32 s4, {f32(SCALE)}')
    for t in range(4):
        for r in range(16):
            p.I(f'v_mul_f32 v{OA+16*t+r}, s4, v{OA+16*t+r}')
        for r in range(8):
            p.I(f'v_cvt_pk_bf16_f32 v{QF+8*t+r}, v{OA+16*t+2*r}, v{OA+16*t+2*r+1}')
    for i in kreads(KF, V_KL0, V_KL1, 8192): p.I(i)
    for s2 in range(8):
        c = '0' if s2 == 0 else vr(S0, 16)
        p.I(f'v_mfma_f32_32x32x16_bf16 {vr(S0,16)}, {vr(K0F+4*s2,4)}, {vr(QF+4*s2,4)}, {c}')
    for r in range(64): p.I(f'v_mov_b32 v{OA+r}, 0')
    p.I(f'v_mov_b32 v{V_L0}, 0')
    p.I(f'v_mov_b32 v{V_L1}, 0')
    def maxtree(S):
        l = [f'v_max3_f32 v{V_MX}, v{S}, v{S+1}, v{S+2}',
             f'v_max3_f32 v{V_T0}, v{S+3}, v{S+4}, v{S+5}',
             f'v_max3_f32 v{V_MX}, v{V_MX}, v{S+6}, v{S+7}',
             f'v_max3_f32 v{V_T0}, v{V_T0}, v{S+8}, v{S+9}',
             f'v_max3_f32 v{V_MX}, v{V_MX}, v{S+10}, v{S+11}',
             f'v_max3_f32 v{V_T0}, v{V_T0}, v{S+12}, v{S+13}',
             f'v_max3_f32 v{V_MX}, v{V_MX}, v{S+14}, v{S+15}',
             f'v_max_f32 v{V_MX}, v{V_MX}, v{V_T0}']
        return l
    for i in maxtree(S0): p.I(i)
    p.I(f'v_mov_b32 v{V_T0}, v{V_MX}')
    p.I(f'v_permlane32_swap_b32 v{V_MX}, v{V_T0}')
    p.I(f'v_max_f32 v{V_MX}, v{V_MX}, v{V_T0}')
    for r in range(16):
        p.I(f'v_sub_f32 v{S0+r}, v{S0+r}, v{V_MX}')
        p.I(f'v_sub_f32 v{NEGM+r}, 0, v{V_MX}')
    p.I(f's_mov_b32 s{S_I}, 0')
    S_KB, S_VB, S_THR = 52, 53, 54
    p.I(f's_mov_b32 s{S_KB}, 16384')
    p.I(f's_mov_b32 s{S_VB}, {163840-16384}')
    p.I(f's_mov_b32 s{S_THR}, {f32(THR)}')
    p.I('s_waitcnt lgkmcnt(0)')

    rare = []
    def phaseA(Scur, Snext, voff, do_qk):
        m = []
        if do_qk:
            for s2 in range(8):
                c = vr(NEGM, 16) if s2 == 0 else vr(Snext, 16)
                m.append(f'v_mfma_f32_32x32x16_bf16 {vr(Snext,16)}, {vr(KF+4*s2,4)}, {vr(QF+4*s2,4)}, {c}')
        rd = []
        for s in range(2):
            for t in range(4):
                for u in range(2):
                    rd.append(f'ds_read_b64_tr_b16 {vr(VF+16*s+4*t+2*u,2)}, v{V_VA} offset:{voff+s*4096+u*2048+t*256}')
        f = []
        for k in range(8):
            f.append(rd[2*k]); f.append(rd[2*k+1])
            f.append(f'v_exp_f32 v{Scur+2*k}, v{Scur+2*k}')
            f.append(f'v_exp_f32 v{Scur+2*k+1}, v{Scur+2*k+1}')
            if k > 0:
                f.append(f'v_cvt_pk_bf16_f32 v{PP+k-1}, v{Scur+2*k-2}, v{Scur+2*k-1}')
        f.append(f'v_cvt_pk_bf16_f32 v{PP+7}, v{Scur+14}, v{Scur+15}')
        if do_qk: interleave(p, m, f)
        else:
            for i in f: p.I(i)
    def phaseB(Scur, Snext, koff, do_k, do_chk):
        m = []
        for s in range(2):
            for t in range(4):
                m.append(f'v_mfma_f32_32x32x16_bf16 {vr(OA+16*t,16)}, {vr(VF+16*s+4*t,4)}, {vr(PP+4*s,4)}, {vr(OA+16*t,16)}')
        f = []
        rd = kreads(KF, V_KA0, V_KA1, koff) if do_k else []
        adds = [f'v_add_f32 v{V_L0 + (r&1)}, v{V_L0 + (r&1)}, v{Scur+r}' for r in range(16)]
        for k in range(8):
            if rd: f.append(rd[k])
            f.append(adds[2*k]); f.append(adds[2*k+1])
        f = []
        for k in range(8):
            if rd and k < 4: f += [rd[2*k], rd[2*k+1]]
            f += [adds[2*k], adds[2*k+1]]
        if do_chk: f += maxtree(Snext)
        interleave(p, m, f)
        if do_chk:
            lab = f'K1_RARE{len(rare)}'; ret = f'K1_RET{len(rare)}'
            rare.append((lab, ret, Snext))
            p.I(f'v_cmp_lt_f32 vcc, s{S_THR}, v{V_MX}')
            p.I(f's_cbranch_vccnz {lab}')
            p.label(ret)
    def body(last):
        p.I('s_barrier')
        p.I(f'v_add_u32 v{V_VA}, s{S_VB}, v{V_VL}')
        if not last:
            p.I(f'v_add_u32 v{V_KA0}, s{S_KB}, v{V_KL0}')
            p.I(f'v_add_u32 v{V_KA1}, s{S_KB}, v{V_KL1}')
        phaseA(S0, S1, 8192, True)
        phaseB(S0, S1, 0, not last, True)
        phaseA(S1, S0, 0, not last)
        phaseB(S1, S0, 8192, not last, not last)
    stamp(p, 4)
    st = len(p.seq)
    p.label('K1_ALOOP')
    body(False)
    p.I(f's_add_u32 s{S_KB}, s{S_KB}, 16384')
    p.I(f's_cmp_eq_u32 s{S_KB}, 81920')
    p.I(f's_cselect_b32 s{S_KB}, 0, s{S_KB}')
    p.I(f's_sub_u32 s{S_VB}, s{S_VB}, 16384')
    p.I(f's_cmp_eq_u32 s{S_VB}, {81920-16384}')
    p.I(f's_cselect_b32 s{S_VB}, {163840-16384}, s{S_VB}')
    p.I(f's_add_u32 s{S_I}, s{S_I}, 1')
    p.I(f's_cmp_lt_u32 s{S_I}, 7')
    p.I('s_waitcnt lgkmcnt(0)')
    p.I('s_cbranch_scc1 K1_ALOOP')
    b = p.seq[st:]
    check_hazards(b + b, 'aloop')
    body(True)
    stamp(p, 5)
    p.I(f'v_add_f32 v{V_L0}, v{V_L0}, v{V_L1}')
    p.I(f'v_mov_b32 v{V_T0}, v{V_L0}')
    p.I(f'v_permlane32_swap_b32 v{V_L0}, v{V_T0}')
    p.I(f'v_add_f32 v{V_L0}, v{V_L0}, v{V_T0}')
    p.I(f'v_rcp_f32 v{V_L0}, v{V_L0}')
    p.I(f's_mul_i32 s4, s{S_B}, 7')
    p.I(f's_add_u32 s4, s4, s{S_W}')
    p.I('s_lshl_b32 s4, s4, 18')
    p.I(f's_lshl_b32 s5, s{S_H}, 13')
    p.I('s_add_u32 s4, s4, s5')
    p.I('s_add_u32 s5, s4, 4096')
    p.I(f'v_lshlrev_b32 v{V_T1}, 4, v0')
    for t in range(4):
        for r in range(16):
            p.I(f'v_mul_f32 v{OA+16*t+r}, v{OA+16*t+r}, v{V_L0}')
        for r in range(8):
            p.I(f'v_cvt_pk_bf16_f32 v{QF+8*t+r}, v{OA+16*t+2*r}, v{OA+16*t+2*r+1}')
        for s in range(2):
            f = 2*t+s
            p.I(f'buffer_store_dwordx4 {vr(QF+8*t+4*s,4)}, v{V_T1}, {sr(SRD_WS,4)}, s{4 if f<4 else 5} offen offset:{(f&3)*1024}')
    if STAMP: p.I('s_waitcnt vmcnt(0)')
    stamp(p, 6)
    stamp(p, 7, True)
    stamp_flush(p, 8, S_W, 0, 8)
    p.I('s_endpgm')
    for lab, ret, S in rare:
        p.label(lab)
        p.I('s_nop 15')
        p.I('s_nop 15')
        p.I(f'v_mov_b32 v{V_T0}, v{V_MX}')
        p.I(f'v_permlane32_swap_b32 v{V_MX}, v{V_T0}')
        p.I(f'v_max3_f32 v{V_MX}, v{V_MX}, v{V_T0}, 0')
        p.I(f'v_exp_f32 v{V_T0}, -v{V_MX}')
        for r in range(16):
            p.I(f'v_sub_f32 v{S+r}, v{S+r}, v{V_MX}')
            p.I(f'v_sub_f32 v{NEGM+r}, v{NEGM+r}, v{V_MX}')
        p.I(f'v_mul_f32 v{V_L0}, v{V_L0}, v{V_T0}')
        p.I(f'v_mul_f32 v{V_L1}, v{V_L1}, v{V_T0}')
        for r in range(64):
            p.I(f'v_mul_f32 v{OA+r}, v{OA+r}, v{V_T0}')
        p.I('s_nop 3')
        p.I(f's_branch {ret}')

    p.label('K1_LOADER')
    p.lds_q = []
    VP = 8
    for j in range(4):
        p.I(f'v_xor_b32 v7, {j}, v2')
        p.I('v_lshl_add_u32 v7, v4, 2, v7')
        p.I('v_lshlrev_b32 v7, 4, v7')
        p.I(f'v_lshl_add_u32 v{VP+j}, v3, 8, v7')
    p.I(f's_lshl_b32 s4, s{S_B}, 5')
    p.I(f's_add_u32 s4, s4, s{S_H}')
    p.I('s_lshl_b32 s12, s4, 17')
    def ld(kind, n):
        if kind == 'K': lds = (n % 10) * 8192
        else: lds = 163840 - 8192 * (1 + n % 10)
        for half in range(2):
            p.I(f's_add_u32 s13, s12, {n*8192 + half*4096}')
            p.I(f's_mov_b32 m0, {lds + half*4096}')
            for q in range(4):
                v = VP + q if kind == 'K' else VP
                sd = SRD_K if kind == 'K' else SRD_V
                p.I(f'buffer_load_dwordx4 v{v}, {sr(sd,4)}, s13 offen offset:{q*1024} nt lds')
    order = [('K', 0), ('K', 1)]
    for i in range(8):
        order.append(('V', 2*i))
        if 2*i+2 < 16: order.append(('K', 2*i+2))
        order.append(('V', 2*i+1))
        if 2*i+3 < 16: order.append(('K', 2*i+3))
    for o in order[:7]: ld(*o)
    for i in range(18):
        p.I('s_barrier')
        if i == 8:
            for o in order[7:9]: ld(*o)
    p.I('s_waitcnt vmcnt(56)')
    p.I('s_barrier')
    for o in order[9:14]: ld(*o)
    p.I('s_waitcnt vmcnt(63)')
    p.I('s_barrier')
    pos = 14
    for i in range(1, 8):
        nxt = len(order[2+4*(i+1): 2+4*(i+2)]) * 8
        p.I(f's_waitcnt vmcnt({nxt})')
        for o in order[2+4*(i+2): 2+4*(i+3)]: ld(*o)
        p.I('s_barrier')
    p.label('K1_END')
    p.I('s_endpgm')
    check_hazards(p.seq, 'k1')
    return p.text(), K1

def gen_k2():
    p = Prog()
    K2 = 'mha_oproj_kernel'
    p.raw(f'.globl {K2}\n.p2align 8\n.type {K2},@function\n{K2}:')
    D = 8
    S_W = 3
    SRD_WO, SRD_O, SRD_OUT = 32, 36, 40
    p.I('s_cmp_ge_u32 s2, 256')
    p.I('s_cbranch_scc1 K2_END')
    p.I('s_and_b32 s4, s2, 7')
    p.I('s_lshr_b32 s5, s2, 3')
    p.I('s_lshl_b32 s4, s4, 5')
    p.I('s_add_u32 s4, s4, s5')
    p.I('s_cmp_ge_u32 s4, 252')
    p.I('s_cbranch_scc1 K2_END')
    p.I('s_load_dwordx16 s[16:31], s[0:1], 0')
    p.I('s_mul_i32 s5, s4, 57')
    p.I('s_lshr_b32 s8, s5, 9')
    p.I('s_mul_i32 s5, s8, 9')
    p.I('s_sub_u32 s9, s4, s5')
    p.I('v_lshrrev_b32 v1, 6, v0')
    p.I('v_and_b32 v0, 63, v0')
    p.I(f'v_readfirstlane_b32 s{S_W}, v1')
    p.I('v_and_b32 v2, 3, v0')
    p.I('v_bfe_u32 v3, v0, 2, 2')
    p.I('v_bfe_u32 v4, v0, 4, 1')
    p.I('v_lshrrev_b32 v5, 5, v0')
    V_OD, V_WD, V_RA = 8, 9, 10
    p.I(f'v_lshlrev_b32 v{V_OD}, 4, v0')
    p.I('v_lshl_add_u32 v6, v5, 2, v3')
    p.I('s_movk_i32 s5, 1152')
    p.I('v_mul_lo_u32 v6, v6, s5')
    p.I('v_lshl_add_u32 v7, v4, 2, v2')
    p.I(f'v_lshl_add_u32 v{V_WD}, v7, 4, v6')
    p.I('v_lshlrev_b32 v6, 9, v5')
    p.I('v_lshl_add_u32 v6, v3, 6, v6')
    p.I('v_and_b32 v7, 1, v2')
    p.I('v_lshl_add_u32 v6, v7, 5, v6')
    p.I('v_lshl_add_u32 v6, v4, 4, v6')
    p.I('v_lshrrev_b32 v7, 1, v2')
    p.I('v_lshl_add_u32 v6, v7, 3, v6')
    p.I(f's_lshl_b32 s10, s{S_W}, 14')
    p.I(f'v_add_u32 v{V_RA}, s10, v6')
    p.I('s_waitcnt lgkmcnt(0)')
    srd(p, SRD_WO, 24, W_BYTES)
    srd(p, SRD_O, 30, O_BYTES)
    srd(p, SRD_OUT, 26, X_BYTES)
    stamp(p, 0, True)
    stamp(p, 1)
    S_O0, S_O1, S_WO, S_T = 44, 45, 46, 47
    p.I(f's_lshl_b32 s{S_O0}, s8, 19')
    p.I(f's_lshl_b32 s4, s{S_W}, 16')
    p.I(f's_add_u32 s{S_O0}, s{S_O0}, s4')
    p.I(f's_add_u32 s{S_O1}, s{S_O0}, {256*1024}')
    p.I(f's_mul_i32 s{S_WO}, s{S_W}, {1024*1152}')
    p.I('s_lshl_b32 s4, s9, 7')
    p.I(f's_add_u32 s{S_WO}, s{S_WO}, s4')
    OF, AF, ACC = 16, 80, 112
    def loads(j):
        sl = j % D
        p.I(f'buffer_load_dwordx4 {vr(OF+8*sl,4)}, v{V_OD}, {sr(SRD_O,4)}, s{S_O0} offen')
        p.I(f's_add_u32 s{S_T}, s10, {sl*2048}')
        p.I(f'buffer_load_dwordx4 {vr(OF+8*sl+4,4)}, v{V_OD}, {sr(SRD_O,4)}, s{S_O1} offen')
        p.I(f's_mov_b32 m0, s{S_T}')
        p.I(f's_add_u32 s{S_O0}, s{S_O0}, 1024')
        p.I(f'buffer_load_dwordx4 v{V_WD}, {sr(SRD_WO,4)}, s{S_WO} offen lds')
        p.I(f's_add_u32 s{S_T}, s{S_T}, 1024')
        p.I(f's_mov_b32 m0, s{S_T}')
        p.I(f's_add_u32 s{S_WO}, s{S_WO}, {8*1152}')
        p.I(f'buffer_load_dwordx4 v{V_WD}, {sr(SRD_WO,4)}, s{S_WO} offen lds')
        p.I(f's_add_u32 s{S_WO}, s{S_WO}, {8*1152}')
        p.I(f's_add_u32 s{S_O1}, s{S_O1}, 1024')
    def areads(j):
        sl = j % D; a = AF + 8*(j % 2)
        for tn in range(2):
            for u in range(2):
                p.I(f'ds_read_b64_tr_b16 {vr(a+4*tn+2*u,2)}, v{V_RA} offset:{sl*2048+u*1024+tn*256}')
    def mf(j):
        sl = j % D; a = AF + 8*(j % 2)
        for tq in range(2):
            for tn in range(2):
                c = ACC + 16*(tn + 2*tq)
                p.I(f'v_mfma_f32_32x32x16_bf16 {vr(c,16)}, {vr(a+4*tn,4)}, {vr(OF+8*sl+4*tq,4)}, {vr(c,16)}')
    for j in range(D): loads(j)
    for r in range(64): p.I(f'v_mov_b32 v{ACC+r}, 0')
    p.I(f's_waitcnt vmcnt({4*(D-1)})')
    stamp(p, 2)
    areads(0)
    p.I('s_mov_b32 s11, 0')
    st = len(p.seq)
    p.label('K2_LOOP')
    for j in range(D):
        p.I(f's_waitcnt vmcnt({4*(D-2)})')
        areads(j+1)
        mf(j)
        loads(j)
    p.I('s_add_u32 s11, s11, 1')
    p.I(f's_cmp_lt_u32 s11, {64//D - 1}')
    p.I('s_cbranch_scc1 K2_LOOP')
    b = p.seq[st:]
    check_hazards(b + b, 'k2loop')
    for j in range(D):
        if j + 1 < D:
            p.I(f's_waitcnt vmcnt({4*(D-2-j)})')
            areads(j+1)
        mf(j)
    stamp(p, 3)
    p.I('s_waitcnt lgkmcnt(0)')
    p.I('s_barrier')
    p.I(f's_lshl_b32 s4, s{S_W}, 12')
    p.I(f'v_add_u32 v11, s4, v{V_OD}')
    for o in range(4):
        for g in range(4):
            p.I(f'ds_write_b128 v11, {vr(ACC+16*o+4*g,4)} offset:{o*16384+g*1024}')
    p.I('s_waitcnt lgkmcnt(0)')
    p.I('s_barrier')
    p.I(f'v_add_u32 v11, s10, v{V_OD}')
    for k in range(4):
        for g in range(4):
            p.I(f'ds_read_b128 {vr(ACC+16*k+4*g,4)}, v11 offset:{k*4096+g*1024}')
    for r in range(16):
        p.I(f'v_add_f32 v{ACC+r}, v{ACC+r}, v{ACC+16+r}')
        p.I(f'v_add_f32 v{ACC+32+r}, v{ACC+32+r}, v{ACC+48+r}')
    for r in range(16):
        p.I(f'v_add_f32 v{ACC+r}, v{ACC+r}, v{ACC+32+r}')
    for r in range(8):
        p.I(f'v_cvt_pk_bf16_f32 v{OF+r}, v{ACC+2*r}, v{ACC+2*r+1}')
    p.I('v_and_b32 v6, 31, v0')
    p.I('s_movk_i32 s5, 1152')
    p.I('v_mul_lo_u32 v6, v6, s5')
    p.I('v_lshl_add_u32 v6, v5, 5, v6')
    p.I(f's_lshr_b32 s4, s{S_W}, 1')
    p.I('s_lshl_b32 s5, s8, 1')
    p.I('s_add_u32 s4, s4, s5')
    p.I(f's_mul_i32 s4, s4, {32*1152}')
    p.I('s_lshl_b32 s5, s9, 7')
    p.I('s_add_u32 s4, s4, s5')
    p.I(f's_and_b32 s5, s{S_W}, 1')
    p.I('s_lshl_b32 s5, s5, 6')
    p.I('s_add_u32 s4, s4, s5')
    p.I(f'buffer_store_dwordx4 {vr(OF,4)}, v6, {sr(SRD_OUT,4)}, s4 offen')
    p.I(f'buffer_store_dwordx4 {vr(OF+4,4)}, v6, {sr(SRD_OUT,4)}, s4 offen offset:16')
    if STAMP: p.I('s_waitcnt vmcnt(0)')
    stamp(p, 4)
    stamp(p, 5, True)
    stamp_flush(p, 6, S_W, 0x40000, 8)
    p.label('K2_END')
    p.I('s_endpgm')
    check_hazards(p.seq, 'k2')
    return p.text(), K2

def kd(name, vgpr, sgpr=96):
    return f'''.p2align 6
.amdhsa_kernel {name}
  .amdhsa_next_free_vgpr {vgpr}
  .amdhsa_next_free_sgpr {sgpr}
  .amdhsa_accum_offset {(vgpr+3)//4*4}
  .amdhsa_group_segment_fixed_size 0
  .amdhsa_kernarg_size 64
  .amdhsa_user_sgpr_count 2
  .amdhsa_user_sgpr_kernarg_segment_ptr 1
  .amdhsa_system_sgpr_workgroup_id_x 1
.end_amdhsa_kernel
'''

def main(out):
    t1, k1 = gen_k1()
    t2, k2 = gen_k2()
    hdr = open('cdna_kernels/' + NAME + '.s.ref').read().split('; Override')[0]
    s = hdr
    s += f'; @launch kernel={k1} grid=(256,1,1) block=(512,1,1) lds=163840\n'
    s += f'; @launch kernel={k2} grid=(256,1,1) block=(256,1,1) lds=65536\n'
    s += '.amdgcn_target "amdgcn-amd-amdhsa--gfx950"\n.text\n'
    s += t1 + t2
    s += '.section .rodata,"a"\n'
    s += kd(k1, 256) + kd(k2, 176)
    open(out, 'w').write(s)

if __name__ == '__main__':
    if '--stamp' in sys.argv:
        STAMP = True; sys.argv.remove('--stamp')
    main(sys.argv[1] if len(sys.argv) > 1 else 'cdna_kernels/' + NAME + '.s')
```

```python
import sys, struct
from asmlib import *
import gen1

def f32(x): return '0x%08x' % struct.unpack('<I', struct.pack('<f', x))[0]

NAME = 'standalone__mha_block_cached__near_ridge'
SCALE = (128 ** -0.5) * 1.4426950408889634
THR = 8.0
X_BYTES = 8*224*576*2
KV_BYTES = 8*32*512*128*2
W_BYTES = 576*4096*2
O_BYTES = 56*256*1024

OPT = dict(lw=12, lw0=63, coop=0, pp='', pq='', nochk=0, anovalu=0, anoread=0, skq=1, ska=2, qnomfma=0, qnoread=0, free=0, sleep=1, rot=3, qnoload=0, lonly=0, xpat=0, only='', norot=0, win=24, kvwin=0, trace=0, wd=3, stamp=0, kvnt=1, wopf=1, bstep=2, boff=1, anoload=0, prio=0, ud=3, ost='')

def vr(a, n=1): return f'v{a}' if n == 1 else f'v[{a}:{a+n-1}]'
def sr(a, n=1): return f's{a}' if n == 1 else f's[{a}:{a+n-1}]'

def srd(p, dst, lo, nbytes):
    p.I(f's_mov_b32 s{dst}, s{lo}')
    p.I(f's_mov_b32 s{dst+1}, s{lo+1}')
    p.I(f's_mov_b32 s{dst+2}, {nbytes}')
    p.I(f's_mov_b32 s{dst+3}, 0x00020000')

def stamp(p, k, real=False):
    if not OPT['stamp']: return
    p.I('s_waitcnt lgkmcnt(0)')
    p.I(f's_memrealtime s[{64+2*k}:{65+2*k}]' if real else f's_memtime s[{64+2*k}:{65+2*k}]')
    p.I('s_waitcnt lgkmcnt(0)')
def stamp_flush(p, n, wave_sreg, region, nw):
    if not OPT['stamp']: return
    p.I(f's_add_u32 s60, s30, {(64<<20) + region}')
    p.I('s_addc_u32 s61, s31, 0')
    p.I('s_mov_b32 s62, 0x100000')
    p.I('s_mov_b32 s63, 0x00020000')
    p.I(f's_mul_i32 s4, s2, {nw}')
    p.I(f's_add_u32 s4, s4, s{wave_sreg}')
    p.I('s_lshl_b32 s4, s4, 6')
    p.I('v_mov_b32 v1, 0')
    for k in range(n):
        p.I(f'v_mov_b32 v2, s{64+2*k}')
        p.I(f'buffer_store_dword v2, v1, s[60:63], s4 offen offset:{4*k}')

TRC = 92160
def trace(p):
    if not OPT['trace']: return
    p.I('s_waitcnt lgkmcnt(0)')
    p.I('s_memtime s[86:87]')
    p.I('s_waitcnt lgkmcnt(0)')
    p.I('v_mov_b32 v36, s86')
    p.I('v_mov_b32 v37, s85')
    p.I('ds_write_b32 v37, v36')
    p.I('s_add_u32 s85, s85, 4')
def trace_init(p, S_W):
    if not OPT['trace']: return
    p.I(f's_lshl_b32 s85, s{S_W}, 8')
    p.I(f's_add_u32 s85, s85, {TRC}')
def trace_flush(p, S_W):
    if not OPT['trace']: return
    p.I('s_waitcnt lgkmcnt(0)')
    p.I(f's_add_u32 s60, s30, {(64<<20) + 0x80000}')
    p.I('s_addc_u32 s61, s31, 0')
    p.I('s_mov_b32 s62, 0x200000')
    p.I('s_mov_b32 s63, 0x00020000')
    p.I(f's_lshl_b32 s4, s{S_W}, 8')
    p.I(f's_add_u32 s4, s4, {TRC}')
    p.I('v_lshlrev_b32 v36, 2, v0')
    p.I('v_add_u32 v37, s4, v36')
    p.I('ds_read_b32 v38, v37')
    p.I('s_lshl_b32 s4, s2, 3')
    p.I(f's_add_u32 s4, s4, s{S_W}')
    p.I('s_lshl_b32 s4, s4, 9')
    p.I('buffer_store_dword v38, v36, s[60:63], s4 offen')

def interleave(p, mfmas, fillers, lead=0):
    fi = 0
    for _ in range(lead):
        if fi < len(fillers): p.I(fillers[fi]); fi += 1
    n = len(mfmas)
    rem = len(fillers) - fi
    for k, m in enumerate(mfmas):
        p.I(m)
        cnt = (rem * (k + 1)) // n - (rem * k) // n
        for _ in range(cnt):
            p.I(fillers[fi]); fi += 1
    assert fi == len(fillers)

XS = [126976, 32768, 61440]
WSL = [16384, 110592, 94208]
FLG = 90112
VTOP = 163840
HO = 57344
NVS = 8

def gen_k1():
    p = Prog(); p.nlab = 0
    K1 = 'mha_attn_kernel'
    p.raw(f'.globl {K1}\n.p2align 8\n.type {K1},@function\n{K1}:')
    S_W, S_B, S_H, S_I, S_KS = 3, 8, 9, 10, 11
    SRD_X, SRD_WQ, SRD_K, SRD_V, SRD_WS, SRD_WO = 32, 36, 40, 44, 48, 80
    p.I('s_cmp_ge_u32 s2, 256')
    p.I('s_cbranch_scc1 K1_END')
    p.I('s_load_dwordx16 s[16:31], s[0:1], 0')
    p.I('v_lshrrev_b32 v1, 6, v0')
    p.I('v_and_b32 v0, 63, v0')
    p.I(f'v_readfirstlane_b32 s{S_W}, v1')
    p.I('s_mov_b32 s84, 0')
    p.I('s_and_b32 s4, s2, 7')
    p.I('s_lshr_b32 s5, s2, 3')
    p.I('s_and_b32 s6, s4, 1')
    p.I('s_lshl_b32 s6, s6, 2')
    p.I('s_and_b32 s7, s5, 3')
    p.I(f's_add_u32 s{S_B}, s6, s7')
    p.I('s_lshr_b32 s6, s4, 1')
    p.I('s_lshl_b32 s6, s6, 3')
    p.I('s_lshr_b32 s5, s5, 2')
    p.I(f's_add_u32 s{S_H}, s6, s5')
    p.I('s_lshl_b32 s6, s7, 1')
    p.I(f's_add_u32 s{S_KS}, s5, s6')
    p.I(f's_sub_u32 s6, s{S_KS}, 9')
    p.I(f's_cmp_ge_u32 s{S_KS}, 9')
    p.I(f's_cselect_b32 s{S_KS}, s6, s{S_KS}')
    p.I('s_mov_b32 s88, s7'); p.I('s_mov_b32 s89, s5')
    if OPT['coop']: OPT['rot'] = 0; OPT['norot'] = 1
    if OPT['norot']: p.I(f's_mov_b32 s{S_KS}, 0')
    if OPT['rot'] == 3:
        p.I('s_add_u32 s6, s5, s7')
        p.I('s_mul_i32 s13, s6, 86')
        p.I('s_lshr_b32 s13, s13, 8')
        p.I('s_mul_i32 s13, s13, 3')
        p.I('s_sub_u32 s6, s6, s13')
        p.I(f's_mul_i32 s{S_KS}, s6, 3')
    if OPT['rot'] == 2:
        p.I('s_add_u32 s6, s5, s7')
        p.I('s_and_b32 s6, s6, 1')
        p.I(f's_mul_i32 s{S_KS}, s6, 5')
    if OPT['rot'] == 4:
        p.I('s_add_u32 s6, s5, s7')
        p.I('s_and_b32 s6, s6, 3')
        p.I(f's_mul_i32 s{S_KS}, s6, 2')
    p.I('s_add_u32 s14, s5, s7')
    p.I('s_and_b32 s14, s14, 3')
    p.I(f's_mul_i32 s14, s14, {OPT["bstep"]}')
    p.I(f's_add_u32 s14, s14, {OPT["boff"]}')
    p.I('v_and_b32 v2, 3, v0')
    p.I('v_bfe_u32 v3, v0, 2, 2')
    p.I('v_lshrrev_b32 v4, 4, v0')
    p.I('v_lshrrev_b32 v5, 5, v0')
    p.I('v_and_b32 v6, 31, v0')
    V_FA, V_DA, V_FV, V_DV = 32, 33, 34, 35
    p.I(f'v_lshlrev_b32 v{V_FA}, 2, v0')
    p.I(f'v_add_u32 v{V_FA}, {FLG}, v{V_FA}')
    p.I(f's_add_u32 s4, s{S_W}, 1')
    p.I('s_and_b32 s4, s4, 7')
    p.I('s_lshl_b32 s4, s4, 8')
    p.I(f'v_add_u32 v{V_DA}, s4, v{V_FA}')
    p.I(f's_sub_u32 s4, s{S_W}, 4')
    p.I('s_cmp_lt_u32 s4, 3')
    p.I('s_cselect_b32 s4, 9, 0')
    p.I(f'v_mov_b32 v{V_DV}, s4')
    p.I(f'ds_write_b32 v{V_DA}, v{V_DV}')
    p.I('s_waitcnt lgkmcnt(0)')
    srd(p, SRD_X, 16, X_BYTES)
    srd(p, SRD_K, 18, KV_BYTES)
    srd(p, SRD_V, 20, KV_BYTES)
    srd(p, SRD_WQ, 22, W_BYTES)
    srd(p, SRD_WS, 30, O_BYTES)
    srd(p, SRD_WO, 24, W_BYTES)
    SRD_T = 92
    p.I(f's_add_u32 s{SRD_T}, s30, {32<<20}')
    p.I(f's_addc_u32 s{SRD_T+1}, s31, 0')
    p.I(f's_mov_b32 s{SRD_T+2}, 65536')
    p.I(f's_mov_b32 s{SRD_T+3}, 0x00020000')
    stamp(p, 0, True)
    stamp(p, 1)
    trace_init(p, S_W)
    trace(p)
    p.I(f's_cmp_eq_u32 s{S_W}, 7')
    p.I('s_cbranch_scc1 K1_LOADER')

    V_XD0, V_XD1, V_XA0, V_XA1, V_WL, V_WA = 8, 9, 10, 11, 12, 13
    V_KL0, V_KL1, V_VL = 16, 17, 18
    V_KA0, V_KA1, V_VA = 19, 20, 21
    V_L0, V_L1, V_MX, V_T0, V_T1 = 22, 23, 24, 25, 26
    KF, VF, PP, QF, NEGM, S0, S1, OA = 40, 72, 104, 112, 144, 160, 176, 192
    XF = 160
    S_RD, S_XL, S_XO, S_XBASE, S_NEED = 52, 53, 54, 58, 55
    spins = []
    V_TH, V_SK = 27, 28
    p.I(f's_cmp_lg_u32 s{S_W}, 0')
    p.I('s_cbranch_scc1 K1_NOTAB')
    p.I('s_lshl_b32 s15, s2, 8')
    p.I('v_lshlrev_b32 v7, 2, v0')
    p.I(f'buffer_store_dword v0, v7, {sr(SRD_T,4)}, s15 offen')
    p.label('K1_NOTAB')
    if OPT.get('zf'):
        p.I(f's_cmp_lg_u32 s{S_W}, 1')
        p.I('s_cbranch_scc1 K1_NOZF')
        p.I('s_cmp_ge_u32 s2, 128')
        p.I('s_cbranch_scc1 K1_NOZF')
        p.I(f's_add_u32 s60, s30, {33<<20}')
        p.I('s_addc_u32 s61, s31, 0')
        p.I('s_mov_b32 s62, 32768')
        p.I('s_mov_b32 s63, 0x00020000')
        p.I('s_lshl_b32 s15, s2, 8')
        p.I('v_lshlrev_b32 v7, 2, v0')
        p.I('v_mov_b32 v29, 0')
        p.I('buffer_store_dword v29, v7, s[60:63], s15 offen')
        p.label('K1_NOZF')
    p.I('v_add_u32 v7, 1, v0')
    p.I('v_lshlrev_b32 v7, 8, v7')
    p.I(f'v_add_u32 v7, {FLG}, v7')
    p.I('v_cmp_gt_u32 vcc, 7, v0')
    p.I(f'v_cndmask_b32 v{V_FA}, v{V_FA}, v7, vcc')
    p.I(f'v_cndmask_b32 v{V_SK}, 0, 1, vcc')
    p.I(f'v_mul_u32_u24 v7, {OPT["skq"]+1}, v{V_SK}')
    p.I(f'v_sub_u32 v{V_TH}, 1, v7')
    def flag_read(): return f'ds_read_b32 v{V_FV}, v{V_FA}'
    def flag_check():
        if OPT['free']: return
        k = len(spins); lab = f'K1_SPIN{k}'; ret = f'K1_SRET{k}'
        spins.append((lab, ret))
        p.I(f'v_cmp_gt_i32 vcc, v{V_TH}, v{V_FV}')
        p.I(f's_cbranch_vccnz {lab}')
        p.label(ret)
    def release():
        return [f'v_mov_b32 v{V_DV}, s{S_NEED}', f'ds_write_b32 v{V_DA}, v{V_DV}', f's_add_u32 s{S_NEED}, s{S_NEED}, 1', f'v_add_u32 v{V_TH}, 1, v{V_TH}']
    p.I('v_and_b32 v29, 1, v4')
    V_XL0, V_XL1 = 14, 15
    p.I('v_lshrrev_b32 v7, 3, v6')
    p.I('v_lshlrev_b32 v7, 10, v7')
    p.I('v_and_b32 v30, 1, v3')
    p.I('v_lshl_add_u32 v7, v30, 8, v7')
    p.I('v_lshl_add_u32 v7, v2, 6, v7')
    p.I(f'v_xor_b32 v{V_XL0}, v5, v3')
    p.I(f'v_lshl_add_u32 v{V_XL0}, v{V_XL0}, 4, v7')
    p.I(f's_lshl_b32 s4, s{S_W}, 12')
    p.I(f'v_add_u32 v{V_XL0}, s4, v{V_XL0}')
    p.I(f'v_xor_b32 v{V_XL1}, 32, v{V_XL0}')
    p.I('v_lshlrev_b32 v7, 11, v5')
    p.I('v_lshl_add_u32 v7, v3, 6, v7')
    p.I('v_lshl_add_u32 v7, v29, 5, v7')
    p.I('v_and_b32 v30, 1, v2')
    p.I(f'v_lshl_add_u32 v{V_WL}, v30, 4, v7')
    p.I('v_lshrrev_b32 v30, 1, v2')
    p.I(f'v_lshl_add_u32 v{V_WL}, v30, 3, v{V_WL}')
    p.I('v_lshlrev_b32 v7, 10, v5')
    p.I('v_lshl_add_u32 v7, v3, 6, v7')
    p.I('v_lshl_add_u32 v7, v29, 5, v7')
    p.I(f'v_lshl_add_u32 v{V_VL}, v2, 3, v7')
    p.I('v_lshrrev_b32 v7, 2, v6')
    p.I('v_lshlrev_b32 v7, 10, v7')
    p.I('v_lshl_add_u32 v7, v2, 6, v7')
    p.I(f'v_xor_b32 v{V_KL0}, v5, v3')
    p.I(f'v_lshl_add_u32 v{V_KL0}, v{V_KL0}, 4, v7')
    p.I(f'v_xor_b32 v{V_KL1}, 32, v{V_KL0}')
    p.I(f's_mov_b32 s{S_I}, 0')
    p.I(f's_mov_b32 s{S_NEED}, 1')
    for k in range(3):
        p.I(f's_mov_b32 s{52+k}, {XS[k]}')
        p.I(f's_mov_b32 s{56+k}, {WSL[k]}')
    p.I(f'v_mov_b32 v{V_FV}, 0')
    V_H0 = 8
    EA = 144
    WS = [40, 56]; XSET = [72, 88]
    def kreads(dst, a0, a1, off):
        d = dst if isinstance(dst, list) else [dst+4*s2 for s2 in range(8)]
        return [f'ds_read_b128 {vr(d[s2],4)}, v{a1 if s2&1 else a0} offset:{off+(s2>>1)*256}' for s2 in range(8)]
    K0F = VF
    qk0 = []
    for s2 in range(8):
        c = '0' if s2 == 0 else vr(S0, 16)
        qk0.append(f'v_mfma_f32_32x32x16_bf16 {vr(S0,16)}, {vr(K0F+4*s2,4)}, {vr(QF+4*s2,4)}, {c}')
    p.I(f's_cmp_ge_u32 s{S_W}, 4')
    p.I('s_cbranch_scc1 K1_QWAIT')
    for r in range(64): p.I(f'v_mov_b32 v{OA+r}, 0')
    for r in range(48): p.I(f'v_mov_b32 v{EA+r}, 0')
    for r in range(16): p.I(f'v_mov_b32 v{WS[1]+r}, 0')
    for r in range(16): p.I(f'v_mov_b32 v{XSET[1]+r}, 0')
    p.I(f's_lshl_b32 s4, s{S_W}, 13')
    p.I(f's_cmp_eq_u32 s{S_W}, 3')
    p.I('s_cselect_b32 s4, 6144, s4')
    p.I('s_cselect_b32 s5, 4, 1')
    p.I('s_lshl_b32 s5, s5, 11')
    p.I(f's_add_u32 s4, s4, {HO}')
    p.I('v_lshlrev_b32 v7, 4, v0')
    p.I('v_add_u32 v29, s4, v7')
    p.I('v_add_u32 v30, s5, v29')
    p.I('v_add_u32 v31, s5, v30')
    p.I('s_waitcnt vmcnt(0)')
    p.I('s_barrier')
    stamp(p, 2)
    p.I(f's_cmp_eq_u32 s{S_W}, 3')
    p.I('s_cbranch_scc1 K1_QLOOPB')
    def qvariant(V):
        nx = 2 if V == 'A' else 4
        def xreads(s):
            X = XSET[s & 1]
            return [f'ds_read_b128 {vr(X+4*j,4)}, v{V_XA1 if s&1 else V_XA0} offset:{(s>>1)*512 + (16384*j if V == "A" else 4096*j)}' for j in range(nx)]
        def wreads(s):
            W = WS[s & 1]
            if OPT['qnoread']: return []
            return [f'ds_read_b64_tr_b16 {vr(W+4*t+2*u,2)}, v{V_WA} offset:{s*4096+u*1024+t*256}' for t in range(4) for u in range(2)]
        def reads(s):
            x = xreads(s); w = wreads(s)
            return [x[0]] + w[:2] + x[1:2] + w[2:] + x[2:]
        def qmfma(s):
            W = WS[s & 1]; X = XSET[s & 1]
            own = [f'v_mfma_f32_32x32x16_bf16 {vr(OA+16*t,16)}, {vr(W+4*t,4)}, {vr(X,4)}, {vr(OA+16*t,16)}' for t in range(4)]
            if V == 'A':
                ext = [f'v_mfma_f32_32x32x16_bf16 {vr(EA+16*e,16)}, {vr(W+4*e,4)}, {vr(X+4,4)}, {vr(EA+16*e,16)}' for e in range(3)]
                return [own[0], ext[0], own[1], ext[1], own[2], ext[2], own[3]]
            ext = [f'v_mfma_f32_32x32x16_bf16 {vr(EA+16*e,16)}, {vr(W+12,4)}, {vr(X+4+4*e,4)}, {vr(EA+16*e,16)}' for e in range(3)]
            return own + ext
        def grp(m, f):
            fi = 0
            for k, mm in enumerate(m):
                p.I(mm)
                for _ in range(2 if k < len(m) - 1 else len(f)):
                    if fi < len(f): p.I(f[fi]); fi += 1
        st = len(p.seq)
        p.label(f'K1_QLOOP{V}')
        trace(p)
        p.I(f'v_add_u32 v{V_WA}, s56, v{V_WL}')
        p.I(f'v_add_u32 v{V_XA0}, s52, v{V_XL0}')
        p.I(f'v_add_u32 v{V_XA1}, s52, v{V_XL1}')
        flag_check()
        trace(p)
        grp(qmfma(3), reads(0))
        grp(qmfma(0), reads(1))
        grp(qmfma(1), reads(2) + ['s_mov_b32 s4, s52', 's_mov_b32 s52, s53', 's_mov_b32 s53, s54', 's_mov_b32 s54, s4'][:max(0, 14 - len(reads(2)))])
        extra = ['s_mov_b32 s4, s52', 's_mov_b32 s52, s53', 's_mov_b32 s53, s54', 's_mov_b32 s54, s4'][max(0, 14 - len(reads(2))):]
        m = qmfma(2)
        f = reads(3) + release() + [flag_read()]
        fi = 0
        for k, mm in enumerate(m[:-1]):
            p.I(mm)
            for _ in range(3):
                if fi < len(f): p.I(f[fi]); fi += 1
        while fi < len(f): p.I(f[fi]); fi += 1
        for i in extra: p.I(i)
        p.I('s_mov_b32 s4, s56'); p.I('s_mov_b32 s56, s57'); p.I('s_mov_b32 s57, s58'); p.I('s_mov_b32 s58, s4')
        p.I(f's_add_u32 s{S_I}, s{S_I}, 1')
        p.I(f's_cmp_lt_u32 s{S_I}, 9')
        p.I(m[-1])
        p.I('s_waitcnt lgkmcnt(0)')
        p.I(f's_cbranch_scc1 K1_QLOOP{V}')
        body = p.seq[st:]
        check_hazards(body + body, 'qloop' + V)
        m = qmfma(3)
        for i in [x for x in m if int(x.split('[')[1].split(':')[0]) < OA]: p.I(i)
        for i in [x for x in m if int(x.split('[')[1].split(':')[0]) >= OA]: p.I(i)
    qvariant('A')
    p.I('s_branch K1_QDONE')
    qvariant('B')
    p.label('K1_QDONE')
    stamp(p, 3)
    p.I(f'v_sub_u32 v{V_TH}, 10, v{V_SK}')
    flag_check()
    p.I(f'v_mul_u32_u24 v7, {OPT["ska"]+1}, v{V_SK}')
    p.I(f'v_sub_u32 v{V_TH}, 10, v7')
    for i in kreads(K0F, V_KL0, V_KL1, 0): p.I(i)
    p.I(f's_mov_b32 s4, {f32(SCALE)}')
    for e in range(3):
        for r in range(16): p.I(f'v_mul_f32 v{EA+16*e+r}, s4, v{EA+16*e+r}')
        for r in range(8): p.I(f'v_cvt_pk_bf16_f32 v{EA+16*e+r}, v{EA+16*e+2*r}, v{EA+16*e+2*r+1}')
        p.I(f'ds_write_b128 v{29+e}, {vr(EA+16*e,4)}')
        p.I(f'ds_write_b128 v{29+e}, {vr(EA+16*e+4,4)} offset:1024')
    for i in kreads(KF, V_KL0, V_KL1, 8192) + release() + [flag_read()]: p.I(i)
    for t in range(4):
        for h in range(2):
            for r in range(8):
                p.I(f'v_mul_f32 v{OA+16*t+8*h+r}, s4, v{OA+16*t+8*h+r}')
            for r in range(4):
                p.I(f'v_cvt_pk_bf16_f32 v{QF+8*t+4*h+r}, v{OA+16*t+8*h+2*r}, v{OA+16*t+8*h+2*r+1}')
            if 2*t+h >= 1: p.I(qk0[2*t+h-1])
    p.I(qk0[7])
    p.I('s_branch K1_ATT')
    p.label('K1_QWAIT')
    p.lds_q = []
    p.I('s_barrier')
    stamp(p, 2)
    p.I(f's_mov_b32 s{S_NEED}, 10')
    p.I('v_cmp_gt_u32 vcc, 4, v0')
    p.I(f'v_cndmask_b32 v7, v{V_SK}, 0, vcc')
    p.I(f'v_sub_u32 v{V_TH}, 10, v7')
    p.I(f's_sub_u32 s4, s{S_W}, 4')
    p.I('s_lshl_b32 s4, s4, 13')
    p.I(f's_add_u32 s4, s4, {HO}')
    p.I('v_lshlrev_b32 v7, 4, v0')
    p.I('v_add_u32 v29, s4, v7')
    flag_check()
    stamp(p, 3)
    kr = kreads(K0F, V_KL0, V_KL1, 0)
    for s2 in range(8):
        p.I(f'ds_read_b128 {vr(QF+4*s2,4)}, v29 offset:{s2*1024}')
        p.I(kr[s2])
    p.I(f'v_mul_u32_u24 v7, {OPT["ska"]+1}, v{V_SK}')
    p.I(f'v_sub_u32 v{V_TH}, 10, v7')
    interleave(p, qk0, kreads(KF, V_KL0, V_KL1, 8192) + release() + [flag_read()])
    p.label('K1_ATT')
    p.lds_q = []
    p.I('s_nop 0')
    for r in range(64): p.I(f'v_mov_b32 v{OA+r}, 0')
    p.I(f'v_mov_b32 v{V_L0}, 0')
    p.I(f'v_mov_b32 v{V_L1}, 0')
    def maxtree(S):
        return [f'v_max3_f32 v{V_MX}, v{S}, v{S+1}, v{S+2}',
             f'v_max3_f32 v{V_T0}, v{S+3}, v{S+4}, v{S+5}',
             f'v_max3_f32 v{V_MX}, v{V_MX}, v{S+6}, v{S+7}',
             f'v_max3_f32 v{V_T0}, v{V_T0}, v{S+8}, v{S+9}',
             f'v_max3_f32 v{V_MX}, v{V_MX}, v{S+10}, v{S+11}',
             f'v_max3_f32 v{V_T0}, v{V_T0}, v{S+12}, v{S+13}',
             f'v_max3_f32 v{V_MX}, v{V_MX}, v{S+14}, v{S+15}',
             f'v_max_f32 v{V_MX}, v{V_MX}, v{V_T0}']
    for i in maxtree(S0): p.I(i)
    p.I(f'v_mov_b32 v{V_T0}, v{V_MX}')
    p.I(f'v_permlane32_swap_b32 v{V_MX}, v{V_T0}')
    p.I(f'v_max_f32 v{V_MX}, v{V_MX}, v{V_T0}')
    for r in range(16):
        p.I(f'v_sub_f32 v{S0+r}, v{S0+r}, v{V_MX}')
        p.I(f'v_sub_f32 v{NEGM+r}, 0, v{V_MX}')
    p.I(f's_mov_b32 s{S_I}, 0')
    S_KB, S_VB, S_THR = 52, 53, 54
    p.I(f's_mov_b32 s{S_KB}, 16384')
    p.I(f's_mov_b32 s{S_VB}, {VTOP-16384}')
    p.I(f's_mov_b32 s{S_THR}, {"0x7f800000" if OPT["nochk"] else f32(THR)}')
    p.I('s_waitcnt lgkmcnt(0)')

    rare = []
    def filt(f):
        a = OPT['anovalu']
        if a & 1: f = [i for i in f if not i.startswith('v_exp')]
        if a & 2: f = [i for i in f if not i.startswith('v_add_f32')]
        if a & 4: f = [i for i in f if not i.startswith('v_max')]
        if a & 8: f = [i for i in f if not i.startswith('v_cvt')]
        if OPT['anoread']: f = [i for i in f if not (i.startswith('ds_read_b64') or i.startswith('ds_read_b128'))]
        return f
    def phaseA(Scur, Snext, voff, do_qk):
        trace(p)
        flag_check()
        trace(p)
        m = []
        if do_qk:
            for s2 in range(8):
                c = vr(NEGM, 16) if s2 == 0 else vr(Snext, 16)
                m.append(f'v_mfma_f32_32x32x16_bf16 {vr(Snext,16)}, {vr(KF+4*s2,4)}, {vr(QF+4*s2,4)}, {c}')
        rd = []
        for s in range(2):
            for t in range(4):
                for u in range(2):
                    rd.append(f'ds_read_b64_tr_b16 {vr(VF+16*s+4*t+2*u,2)}, v{V_VA} offset:{voff+s*4096+u*2048+t*256}')
        f = []
        for k in range(8):
            f.append(rd[2*k]); f.append(rd[2*k+1])
            f.append(f'v_exp_f32 v{Scur+2*k}, v{Scur+2*k}')
            f.append(f'v_exp_f32 v{Scur+2*k+1}, v{Scur+2*k+1}')
            if k > 0:
                f.append(f'v_cvt_pk_bf16_f32 v{PP+k-1}, v{Scur+2*k-2}, v{Scur+2*k-1}')
        f.append(f'v_cvt_pk_bf16_f32 v{PP+7}, v{Scur+14}, v{Scur+15}')
        f = filt(f)
        if do_qk: interleave(p, m, f)
        else:
            for i in f: p.I(i)
    def phaseB(Scur, Snext, koff, do_k, do_chk, more):
        m = []
        for s in range(2):
            for t in range(4):
                m.append(f'v_mfma_f32_32x32x16_bf16 {vr(OA+16*t,16)}, {vr(VF+16*s+4*t,4)}, {vr(PP+4*s,4)}, {vr(OA+16*t,16)}')
        rd = kreads(KF, V_KA0, V_KA1, koff) if do_k else []
        adds = [f'v_add_f32 v{V_L0 + (r&1)}, v{V_L0 + (r&1)}, v{Scur+r}' for r in range(16)]
        f = []
        for k in range(8):
            if rd and k < 4: f += [rd[2*k], rd[2*k+1]]
            if k == 4 and more: f += release() + [flag_read()]
            f += [adds[2*k], adds[2*k+1]]
        if do_chk: f += maxtree(Snext)
        f = filt(f)
        interleave(p, m, f)
        if do_chk:
            lab = f'K1_RARE{len(rare)}'; ret = f'K1_RET{len(rare)}'
            rare.append((lab, ret, Snext))
            p.I(f'v_cmp_lt_f32 vcc, s{S_THR}, v{V_MX}')
            p.I(f's_cbranch_vccnz {lab}')
            p.label(ret)
    def body(last):
        p.I(f'v_add_u32 v{V_VA}, s{S_VB}, v{V_VL}')
        if not last:
            p.I(f'v_add_u32 v{V_KA0}, s{S_KB}, v{V_KL0}')
            p.I(f'v_add_u32 v{V_KA1}, s{S_KB}, v{V_KL1}')
        pp = str(OPT['pp'])[1:]
        if pp: p.I(f's_setprio {pp[0]}')
        phaseA(S0, S1, 8192, True)
        if pp: p.I(f's_setprio {pp[1]}')
        phaseB(S0, S1, 0, not last, True, True)
        if pp: p.I(f's_setprio {pp[2]}')
        phaseA(S1, S0, 0, not last)
        if pp: p.I(f's_setprio {pp[3]}')
        phaseB(S1, S0, 8192, not last, not last, not last)
    stamp(p, 4)
    st = len(p.seq)
    p.label('K1_ALOOP')
    body(False)
    p.I(f's_add_u32 s{S_KB}, s{S_KB}, 16384')
    p.I(f's_cmp_eq_u32 s{S_KB}, 81920')
    p.I(f's_cselect_b32 s{S_KB}, 0, s{S_KB}')
    p.I(f's_sub_u32 s{S_VB}, s{S_VB}, 16384')
    p.I(f's_cmp_eq_u32 s{S_VB}, {VTOP - NVS*8192 - 16384}')
    p.I(f's_cselect_b32 s{S_VB}, {VTOP-16384}, s{S_VB}')
    p.I(f's_add_u32 s{S_I}, s{S_I}, 1')
    p.I(f's_cmp_lt_u32 s{S_I}, 7')
    p.I('s_waitcnt lgkmcnt(0)')
    p.I('s_cbranch_scc1 K1_ALOOP')
    b = p.seq[st:]
    check_hazards(b + b, 'aloop')
    body(True)
    stamp(p, 5)
    p.I(f'v_add_f32 v{V_L0}, v{V_L0}, v{V_L1}')
    p.I(f'v_mov_b32 v{V_T0}, v{V_L0}')
    p.I(f'v_permlane32_swap_b32 v{V_L0}, v{V_T0}')
    p.I(f'v_add_f32 v{V_L0}, v{V_L0}, v{V_T0}')
    p.I(f'v_rcp_f32 v{V_L0}, v{V_L0}')
    p.I(f's_mul_i32 s4, s{S_B}, 7')
    p.I(f's_add_u32 s4, s4, s{S_W}')
    p.I('s_lshl_b32 s4, s4, 18')
    p.I(f's_lshl_b32 s5, s{S_H}, 13')
    p.I('s_add_u32 s4, s4, s5')
    p.I('s_add_u32 s5, s4, 4096')
    p.I(f'v_lshlrev_b32 v{V_T1}, 4, v0')
    for t in range(4):
        for r in range(16):
            p.I(f'v_mul_f32 v{OA+16*t+r}, v{OA+16*t+r}, v{V_L0}')
        for r in range(8):
            p.I(f'v_cvt_pk_bf16_f32 v{QF+8*t+r}, v{OA+16*t+2*r}, v{OA+16*t+2*r+1}')
        for s in range(2):
            f = 2*t+s
            p.I(f'buffer_store_dwordx4 {vr(QF+8*t+4*s,4)}, v{V_T1}, {sr(SRD_WS,4)}, s{4 if f<4 else 5} offen offset:{(f&3)*1024} {OPT["ost"]}')
    if OPT['stamp']: p.I('s_waitcnt vmcnt(0)')
    stamp(p, 6)
    stamp(p, 7, True)
    stamp_flush(p, 8, S_W, 0, 8)
    trace(p)
    trace_flush(p, S_W)
    p.I('s_endpgm')
    p.auto = False
    for lab, ret, S in rare:
        p.label(lab)
        p.I('s_nop 15')
        p.I('s_nop 15')
        p.I(f'v_mov_b32 v{V_T0}, v{V_MX}')
        p.I('s_nop 1')
        p.I(f'v_permlane32_swap_b32 v{V_MX}, v{V_T0}')
        p.I('s_nop 1')
        p.I(f'v_max3_f32 v{V_MX}, v{V_MX}, v{V_T0}, 0')
        p.I(f'v_exp_f32 v{V_T0}, -v{V_MX}')
        for r in range(16):
            p.I(f'v_sub_f32 v{S+r}, v{S+r}, v{V_MX}')
            p.I(f'v_sub_f32 v{NEGM+r}, v{NEGM+r}, v{V_MX}')
        p.I(f'v_mul_f32 v{V_L0}, v{V_L0}, v{V_T0}')
        p.I(f'v_mul_f32 v{V_L1}, v{V_L1}, v{V_T0}')
        for r in range(64):
            p.I(f'v_mul_f32 v{OA+r}, v{OA+r}, v{V_T0}')
        p.I('s_nop 3')
        p.I(f's_branch {ret}')
    for lab, ret in spins:
        p.label(lab)
        p.I(flag_read())
        p.I('s_waitcnt lgkmcnt(0)')
        p.I(f'v_cmp_gt_i32 vcc, v{V_TH}, v{V_FV}')
        p.I(f's_cbranch_vccz {ret}')
        p.I(f's_sleep {OPT["sleep"]}')
        p.I('s_add_u32 s84, s84, 1')
        p.I('s_cmp_lt_u32 s84, 0x400000')
        p.I(f's_cbranch_scc1 {lab}')
        p.I('s_endpgm')
    p.auto = True

    p.label('K1_LOADER')
    p.lds_q = []
    VP, VX, VW, V_QA, V_QV = 8, 12, 16, 20, 21
    WIN = OPT['win']
    p.I('v_and_b32 v29, 1, v4')
    p.I('v_lshl_add_u32 v7, v29, 2, v3')
    p.I('s_movk_i32 s5, 1152')
    p.I('v_mul_lo_u32 v7, v7, s5')
    p.I('v_lshl_add_u32 v7, v5, 6, v7')
    p.I('v_xor_b32 v30, v2, v29')
    p.I(f'v_lshl_add_u32 v{VX}, v30, 4, v7')
    p.I(f'v_xor_b32 v{VX+1}, 32, v{VX}')
    p.I(f'v_add_u32 v{VX+2}, 16384, v{VX}')
    p.I(f'v_add_u32 v{VX+3}, 24576, v{VX+1}')
    p.I(f'v_add_u32 v{VX+1}, 8192, v{VX+1}')
    if OPT['xpat'] == 1:
        p.I('v_lshrrev_b32 v7, 3, v0')
        p.I('v_mul_lo_u32 v7, v7, s5')
        p.I('v_and_b32 v30, 7, v0')
        p.I(f'v_lshl_add_u32 v{VX}, v30, 4, v7')
        for q in range(1, 4): p.I(f'v_add_u32 v{VX+q}, {q*8192}, v{VX}')
    p.I('v_lshl_add_u32 v7, v4, 2, v2')
    p.I('v_lshlrev_b32 v7, 4, v7')
    p.I(f'v_lshl_add_u32 v{VW}, v3, 13, v7')
    for q in range(1, 4): p.I(f'v_add_u32 v{VW+q}, {q*(32768-1024)}, v{VW}')
    S_XB, S_WBASE, S_XO, S_WO = 52, 53, 54, 55
    p.I(f's_mul_i32 s{S_XB}, s{S_B}, 258048')
    p.I(f's_lshl_b32 s{S_WBASE}, s{S_H}, 8')
    V_Z = 23
    p.I('s_lshl_b32 s15, s2, 8')
    p.I(f'v_mov_b32 v{V_Z}, 0')
    def publish(val):
        p.I(f's_mov_b32 m0, {FLG}')
        if isinstance(val, int):
            p.I(f's_add_u32 s13, s15, {4*val}')
        else:
            p.I(f's_lshl_b32 s13, {val}, 2')
            p.I('s_add_u32 s13, s13, s15')
        p.I(f'buffer_load_dword v{V_Z}, {sr(SRD_T,4)}, s13 offen lds')
    def wait_done(val, drain_pub=None):
        if OPT['free']: return
        k = p.nlab; p.nlab += 1
        p.label(f'K1_LW{k}')
        p.I(f'ds_read_b32 v{V_QV}, v{V_QA}')
        p.I('s_waitcnt lgkmcnt(0)')
        p.I(f'v_cmp_gt_u32 vcc, {val}, v{V_QV}')
        p.I(f's_cbranch_vccz K1_LX{k}')
        p.I(f's_sleep {OPT["sleep"]}')
        p.I('s_add_u32 s84, s84, 1')
        p.I('s_cmp_lt_u32 s84, 0x400000')
        p.I(f's_cbranch_scc1 K1_LW{k}')
        p.I('s_endpgm')
        p.label(f'K1_LX{k}')
        trace(p)
    def stage(slot, mid, lw=63):
        p.I(f's_lshl_b32 s{S_XO}, s{S_KS}, 7')
        p.I(f's_add_u32 s{S_XO}, s{S_XO}, s{S_XB}')
        p.I(f's_lshl_b32 s{S_WO}, s{S_KS}, 19')
        p.I(f's_add_u32 s{S_WO}, s{S_WO}, s{S_WBASE}')
        groups = [('w', 0), ('w', 1)] + [('x', w) for w in range(7)] + [('w', 2), ('w', 3)]
        if OPT['qnoload']: groups = []; mid()
        if OPT['only']: groups = [g for g in groups if g[0] == OPT['only']]
        n = 0
        for kind, g in groups:
            if lw < 63: p.I(f's_waitcnt vmcnt({lw})')
            if kind == 'x':
                p.I(f's_mov_b32 m0, {XS[slot] + g*4096}')
                p.I(f's_add_u32 s13, s{S_XO}, {g*36864}')
                for q in range(4):
                    p.I(f'buffer_load_dwordx4 v{VX+q}, {sr(SRD_X,4)}, s13 offen offset:{q*1024} lds')
            else:
                p.I(f's_mov_b32 m0, {WSL[slot] + g*4096}')
                p.I(f's_add_u32 s13, s{S_WO}, {g*131072}')
                for q in range(4):
                    p.I(f'buffer_load_dwordx4 v{VW+q}, {sr(SRD_WQ,4)}, s13 offen offset:{q*1024} lds')
            n += 4
            if n == WIN: mid()
        p.I(f's_add_u32 s{S_KS}, s{S_KS}, 1')
        p.I(f's_cmp_eq_u32 s{S_KS}, 9')
        p.I(f's_cselect_b32 s{S_KS}, 0, s{S_KS}')
    p.I('v_min_u32 v7, 6, v0')
    p.I('v_lshlrev_b32 v7, 8, v7')
    p.I(f'v_add_u32 v{V_QA}, {FLG+256}, v7')
    p.I(f's_mov_b32 s{S_I}, 0')
    VS = 22
    p.I('v_lshrrev_b32 v7, 3, v0')
    p.I('s_movk_i32 s5, 1152')
    p.I('v_mul_lo_u32 v7, v7, s5')
    p.I('v_and_b32 v30, 7, v0')
    p.I(f'v_lshl_add_u32 v{VS}, v30, 4, v7')
    p.I(f's_mul_i32 s90, s89, {28*1152}')
    p.I(f's_add_u32 s90, s90, s{S_XB}')
    p.I('s_lshl_b32 s91, s88, 17')
    p.I(f's_add_u32 s91, s91, s{S_WBASE}')
    def batch(ks):
        n = 0
        for k in ks:
            for q in range(4):
                p.I(f's_add_u32 s13, s90, {k*128 + q*8*1152}')
                p.I(f'buffer_load_dwordx4 {vr(40+4*(n%32),4)}, v{VS}, {sr(SRD_X,4)}, s13 offen'); n += 1
            p.I(f's_add_u32 s13, s91, {k<<19}')
            for q in range(4):
                p.I(f'buffer_load_dwordx4 {vr(40+4*(n%32),4)}, v{VW+q}, {sr(SRD_WQ,4)}, s13 offen offset:{q*1024}'); n += 1
        return n
    PL = {1: ([0,1,2], {0: [3,4,5], 2: [6,7,8]}), 2: (list(range(9)), {}), 3: ([0,1], {0: [2,3,4], 1: [5,6,7,8]}),
          4: ([0,1,2,3], {1: [4,5,6,7,8]}), 5: ([0,1,2], {1: [3,4,5], 2: [6,7,8]}), 0: ([], {})}[OPT['coop']]
    batch(PL[0])
    for slot in range(3):
        stage(slot, lambda: None, OPT['lw0'])
        if slot == 0: p.I('s_barrier')
        publish(slot + 1)
        trace(p)
        if slot in PL[1]: batch(PL[1][slot])
    p.I(f's_mov_b32 s{S_I}, 3')
    p.label('K1_LQ')
    for slot in range(3):
        p.I(f's_sub_u32 s5, s{S_I}, 2')
        wait_done('s5')
        stage(slot, lambda: None, OPT['lw'])
        p.I(f's_add_u32 s{S_I}, s{S_I}, 1')
        publish(f's{S_I}')
        trace(p)
    p.I(f's_cmp_lt_u32 s{S_I}, 9')
    p.I('s_cbranch_scc1 K1_LQ')
    stamp(p, 2); stamp(p, 3)
    for j in range(4):
        p.I(f'v_xor_b32 v7, {j}, v2')
        p.I('v_lshl_add_u32 v7, v4, 2, v7')
        p.I('v_lshlrev_b32 v7, 4, v7')
        p.I(f'v_lshl_add_u32 v{VP+j}, v3, 8, v7')
    p.I(f's_lshl_b32 s4, s{S_B}, 5')
    p.I(f's_add_u32 s4, s4, s{S_H}')
    p.I('s_lshl_b32 s12, s4, 17')
    NT = 'nt ' if OPT['kvnt'] else ''
    def ld(kind, n):
        if OPT['anoload']: return
        if kind == 'K': lds = (n % 10) * 8192
        else: lds = VTOP - 8192 * (1 + n % NVS)
        for half in range(2):
            p.I(f's_mov_b32 m0, {lds + half*4096}')
            p.I(f's_add_u32 s13, s12, {n*8192 + half*4096}')
            for q in range(4):
                v = VP + q if kind == 'K' else VP
                sd = SRD_K if kind == 'K' else SRD_V
                p.I(f'buffer_load_dwordx4 v{v}, {sr(sd,4)}, s13 offen offset:{q*1024} {NT}lds')
    def qneed(lo, hi):
        need = 0
        for k in range(3):
            for base, size in ((XS[k], 28672), (WSL[k], 16384)):
                if lo < base + size and base < hi: need = max(need, 7 + k)
        return need
    items = []
    for kind, n in [('K', 0), ('K', 1)] + [o for u in range(16) for o in ([('V', u)] + ([('K', u+2)] if u + 2 < 16 else []))]:
        if kind == 'K':
            lds = (n % 10) * 8192
            need = qneed(lds, lds + 8192)
            if lds < HO + 24576 and HO < lds + 8192: need = max(need, 10)
            if n >= 10: need = max(need, 10 if n - 10 < 2 else 11 + n - 12)
            full = 10 if n == 1 else (11 + n - 2 if n >= 2 else None)
        else:
            lds = VTOP - 8192 * (1 + n % NVS)
            need = qneed(lds, lds + 8192)
            if n >= NVS: need = max(need, 11 + n - NVS)
            full = 11 + n if n + 2 >= 16 else None
        items.append((kind, n, need, full))
    got = 6
    for idx, (kind, n, need, full) in enumerate(items):
        if need > got:
            wait_done(need)
            got = need
        ld(kind, n)
        if full is not None: publish(full)
        if OPT['kvwin']: p.I(f's_waitcnt vmcnt({OPT["kvwin"]})')
    p.I('s_waitcnt vmcnt(0)')
    if OPT['wopf']:
        p.I('s_mul_i32 s4, s2, 18432')
        p.I('v_lshlrev_b32 v7, 4, v0')
        for j in range(18):
            p.I(f's_add_u32 s5, s4, {j*1024}')
            p.I(f'buffer_load_dwordx4 {vr(40+4*j,4)}, v7, {sr(SRD_WO,4)}, s5 offen')
        p.I('s_waitcnt vmcnt(0)')
    trace(p)
    trace_flush(p, S_W)
    stamp(p, 4); stamp(p, 5); stamp(p, 6); stamp(p, 7, True)
    stamp_flush(p, 8, S_W, 0, 8)
    p.label('K1_END')
    p.I('s_endpgm')
    check_hazards(p.seq, 'k1')
    return p.text(), K1

def kd(name, vgpr, sgpr=96):
    return f'''.p2align 6
.amdhsa_kernel {name}
  .amdhsa_next_free_vgpr {vgpr}
  .amdhsa_next_free_sgpr {sgpr}
  .amdhsa_accum_offset {(vgpr+3)//4*4}
  .amdhsa_group_segment_fixed_size 0
  .amdhsa_kernarg_size 64
  .amdhsa_user_sgpr_count 2
  .amdhsa_user_sgpr_kernarg_segment_ptr 1
  .amdhsa_system_sgpr_workgroup_id_x 1
.end_amdhsa_kernel
'''

def main(out):
    gen1.STAMP = bool(OPT['stamp'])
    t1, k1 = gen_k1()
    t2, k2 = gen1.gen_k2()
    hdr = open('cdna_kernels/' + NAME + '.s.ref').read().split('; Override')[0]
    s = hdr
    s += f'; @launch kernel={k1} grid=(256,1,1) block=(512,1,1) lds=163840\n'
    s += f'; @launch kernel={k2} grid=(256,1,1) block=(256,1,1) lds=65536\n'
    s += '.amdgcn_target "amdgcn-amd-amdhsa--gfx950"\n.text\n'
    s += t1 + t2
    s += '.section .rodata,"a"\n'
    s += kd(k1, 256, 100) + kd(k2, 176)
    open(out, 'w').write(s)

if __name__ == '__main__':
    out = sys.argv[1]
    for a in sys.argv[2:]:
        k, v = a.split('=')
        OPT[k] = int(v) if v.lstrip('-').isdigit() else v.replace('+', ' ')
    main(out)
```

```python
from asmlib import *
import gen6 as G
from gen6 import vr, sr, srd, stamp, stamp_flush, OPT, X_BYTES, W_BYTES, O_BYTES

P_OFF = 40 << 20
F_OFF = 33 << 20
SLOT = 36864
NSL = 4
FLG2 = NSL * SLOT

def gen_k2():
    p = Prog(); p.nlab = 0
    K2 = 'mha_oproj_kernel'
    p.raw(f'.globl {K2}\n.p2align 8\n.type {K2},@function\n{K2}:')
    S_W = 3
    SRD_WO, SRD_O, SRD_OUT, SRD_P, SRD_F, SRD_T = 32, 36, 40, 44, 48, 92
    S_BG, S_KQ, S_IDX, S_I, S_NEED, S_Q0, S_N0, S_GRP = 8, 9, 10, 11, 12, 52, 53, 54
    p.I('s_cmp_ge_u32 s2, 256')
    p.I('s_cbranch_scc1 K2_END')
    p.I('s_load_dwordx16 s[16:31], s[0:1], 0')
    p.I('s_mov_b32 s84, 0')
    p.I('v_lshrrev_b32 v1, 6, v0')
    p.I('v_and_b32 v0, 63, v0')
    p.I(f'v_readfirstlane_b32 s{S_W}, v1')
    p.I(f's_and_b32 s{S_BG}, s2, 1')
    p.I(f's_bfe_u32 s{S_KQ}, s2, 0x20001')
    p.I(f's_lshr_b32 s{S_IDX}, s2, 3')
    p.I(f's_lshl_b32 s{S_GRP}, s{S_BG}, 5')
    p.I(f's_add_u32 s{S_GRP}, s{S_GRP}, s{S_IDX}')
    p.I(f's_and_b32 s4, s{S_IDX}, 0xfc')
    p.I(f's_sub_u32 s5, s{S_IDX}, 28')
    p.I('s_mul_i32 s5, s5, 7')
    p.I(f's_and_b32 s6, s{S_IDX}, 3')
    p.I('s_lshl_b32 s6, s6, 8')
    p.I(f's_cmp_ge_u32 s{S_IDX}, 28')
    p.I('s_cselect_b32 s4, s5, s4')
    p.I(f's_cselect_b32 s{S_N0}, 1024, s6')
    p.I(f's_mul_i32 s5, s{S_BG}, 28')
    p.I(f's_add_u32 s{S_Q0}, s4, s5')
    p.I('v_and_b32 v2, 3, v0')
    p.I('v_bfe_u32 v3, v0, 2, 2')
    p.I('v_lshrrev_b32 v4, 4, v0')
    p.I('v_lshrrev_b32 v5, 5, v0')
    p.I('v_and_b32 v6, 31, v0')
    V_FA, V_DA, V_FV, V_DV, V_L16 = 32, 33, 34, 35, 31
    p.I(f'v_lshlrev_b32 v{V_L16}, 4, v0')
    p.I(f'v_lshlrev_b32 v{V_FA}, 2, v0')
    p.I(f'v_add_u32 v{V_FA}, {FLG2}, v{V_FA}')
    p.I(f's_add_u32 s4, s{S_W}, 1')
    p.I('s_and_b32 s4, s4, 7')
    p.I('s_lshl_b32 s4, s4, 8')
    p.I(f'v_add_u32 v{V_DA}, s4, v{V_FA}')
    p.I(f'v_mov_b32 v{V_DV}, 0')
    p.I(f'ds_write_b32 v{V_DA}, v{V_DV}')
    p.I('s_waitcnt lgkmcnt(0)')
    srd(p, SRD_WO, 24, W_BYTES)
    srd(p, SRD_O, 30, O_BYTES)
    srd(p, SRD_OUT, 26, X_BYTES)
    for d, off, nb in ((SRD_P, P_OFF, 16 << 20), (SRD_F, F_OFF, 32768), (SRD_T, 32 << 20, 65536)):
        p.I(f's_add_u32 s{d}, s30, {off}')
        p.I(f's_addc_u32 s{d+1}, s31, 0')
        p.I(f's_mov_b32 s{d+2}, {nb}')
        p.I(f's_mov_b32 s{d+3}, 0x00020000')
    stamp(p, 0, True); stamp(p, 1)
    p.I(f's_cmp_eq_u32 s{S_W}, 7')
    p.I('s_cbranch_scc1 K2_LOADER')
    p.I(f's_cmp_ge_u32 s{S_W}, 4')
    p.I('s_cbranch_scc1 K2_IDLE')
    ACC = 192
    AS = [40, 56]; BS = [72, 80]
    V_AL, V_BL, V_AA, V_BA = 8, 9, 10, 11
    spins = []
    def flag_read(): return f'ds_read_b32 v{V_FV}, v{V_FA}'
    def flag_check():
        k = len(spins); lab = f'K2_SPIN{k}'; ret = f'K2_SRET{k}'
        spins.append((lab, ret))
        p.I(f'v_cmp_gt_u32 vcc, s{S_NEED}, v{V_FV}')
        p.I(f's_cbranch_vccnz {lab}')
        p.label(ret)
    def release():
        return [f'v_mov_b32 v{V_DV}, s{S_NEED}', f'ds_write_b32 v{V_DA}, v{V_DV}', f's_add_u32 s{S_NEED}, s{S_NEED}, 1']
    for r in range(64): p.I(f'v_mov_b32 v{ACC+r}, 0')
    for r in range(16): p.I(f'v_mov_b32 v{AS[1]+r}, 0')
    for r in range(8): p.I(f'v_mov_b32 v{BS[1]+r}, 0')
    p.I('v_and_b32 v7, 1, v2')
    p.I('v_lshlrev_b32 v7, 5, v7')
    p.I('v_and_b32 v29, 1, v4')
    p.I('v_lshl_add_u32 v7, v29, 4, v7')
    p.I('v_lshrrev_b32 v30, 1, v2')
    p.I('v_lshl_add_u32 v7, v30, 3, v7')
    p.I('v_lshl_add_u32 v7, v3, 6, v7')
    p.I(f's_mov_b32 s{S_NEED}, 1')
    p.I(f's_mov_b32 s{S_I}, 0')
    p.I('s_mov_b32 s56, 0')
    p.I(f'v_mov_b32 v{V_FV}, 0')
    p.I(f's_cmp_ge_u32 s{S_IDX}, 28')
    p.I('s_cbranch_scc1 K2_T2')
    def variant(T):
        if T == 1:
            p.I(f'v_lshl_add_u32 v{V_AL}, v5, 10, v7')
            p.I(f's_lshl_b32 s4, s{S_W}, 12')
            p.I('s_add_u32 s4, s4, 16384')
        else:
            p.I(f'v_lshl_add_u32 v{V_AL}, v5, 9, v7')
            p.I(f's_lshl_b32 s4, s{S_W}, 13')
            p.I('s_add_u32 s4, s4, 8192')
        p.I(f'v_add_u32 v{V_BL}, s4, v{V_L16}')
        p.I('s_barrier')
        stamp(p, 2)
        def reads(s):
            A = AS[s & 1]; B = BS[s & 1]
            if T == 1:
                a = [f'ds_read_b64_tr_b16 {vr(A+4*t+2*u,2)}, v{V_AA} offset:{s*4096+u*2048+t*256}' for t in range(4) for u in range(2)]
                b = [f'ds_read_b128 {vr(B,4)}, v{V_BA} offset:{s*1024}']
            else:
                a = [f'ds_read_b64_tr_b16 {vr(A+4*t+2*u,2)}, v{V_AA} offset:{s*2048+u*1024+t*256}' for t in range(2) for u in range(2)]
                b = [f'ds_read_b128 {vr(B+4*q,4)}, v{V_BA} offset:{s*1024+q*4096}' for q in range(2)]
            return b[:1] + a + b[1:]
        def mf(s):
            A = AS[s & 1]; B = BS[s & 1]
            if T == 1:
                return [f'v_mfma_f32_32x32x16_bf16 {vr(ACC+16*t,16)}, {vr(A+4*t,4)}, {vr(B,4)}, {vr(ACC+16*t,16)}' for t in range(4)]
            return [f'v_mfma_f32_32x32x16_bf16 {vr(ACC+16*(2*q+t),16)}, {vr(A+4*t,4)}, {vr(B+4*q,4)}, {vr(ACC+16*(2*q+t),16)}' for q in range(2) for t in range(2)]
        def grp(m, f, per=3):
            fi = 0
            for k, mm in enumerate(m):
                p.I(mm)
                for _ in range(per if k < len(m) - 1 else len(f)):
                    if fi < len(f): p.I(f[fi]); fi += 1
        st = len(p.seq)
        p.label(f'K2_LOOP{T}')
        p.I(f'v_add_u32 v{V_AA}, s56, v{V_AL}')
        p.I(f'v_add_u32 v{V_BA}, s56, v{V_BL}')
        flag_check()
        grp(mf(3), reads(0))
        grp(mf(0), reads(1))
        grp(mf(1), reads(2))
        m = mf(2)
        grp(m[:3], reads(3) + release() + [flag_read()], 4)
        p.I(f's_add_u32 s56, s56, {SLOT}')
        p.I(f's_cmp_eq_u32 s56, {NSL*SLOT}')
        p.I('s_cselect_b32 s56, 0, s56')
        p.I(f's_add_u32 s{S_I}, s{S_I}, 1')
        p.I(f's_cmp_lt_u32 s{S_I}, 16')
        p.I(m[3])
        p.I('s_waitcnt lgkmcnt(0)')
        p.I(f's_cbranch_scc1 K2_LOOP{T}')
        b = p.seq[st:]
        check_hazards(b + b, f'k2loop{T}')
        for i in mf(3): p.I(i)
    variant(1)
    p.I('s_branch K2_XCH')
    p.label('K2_T2')
    variant(2)
    p.label('K2_XCH')
    stamp(p, 3)
    p.I(f's_cmp_eq_u32 s{S_W}, s{S_KQ}')
    p.I('s_cbranch_scc1 K2_OWN')
    p.I(f's_lshl_b32 s4, s{S_GRP}, 2')
    p.I(f's_add_u32 s4, s4, s{S_W}')
    p.I('s_lshl_b32 s5, s4, 7')
    p.I('s_lshl_b32 s4, s4, 2')
    p.I(f's_add_u32 s4, s4, s{S_KQ}')
    p.I('s_lshl_b32 s4, s4, 14')
    for g in range(16):
        if g % 4 == 0 and g: p.I('s_add_u32 s4, s4, 4096')
        p.I(f'buffer_store_dwordx4 {vr(ACC+4*g,4)}, v{V_L16}, {sr(SRD_P,4)}, s4 offen offset:{(g%4)*1024} sc1')
    p.I(f's_lshl_b32 s4, s{S_KQ}, 2')
    p.I('s_add_u32 s4, s4, s5')
    p.I('v_mov_b32 v7, 0'); p.I('v_mov_b32 v29, 1')
    p.I('s_waitcnt vmcnt(0)')
    p.I(f'buffer_store_dword v29, v7, {sr(SRD_F,4)}, s4 offen sc1')
    stamp(p, 4); stamp(p, 5); stamp(p, 6); stamp(p, 7, True)
    stamp_flush(p, 8, S_W, 0x40000, 8)
    p.I('s_endpgm')
    p.label('K2_OWN')
    p.I('v_min_u32 v7, 3, v0')
    p.I('v_lshlrev_b32 v7, 8, v7')
    p.I(f'v_add_u32 v7, {FLG2+256}, v7')
    p.label('K2_OWNW')
    p.I('ds_read_b32 v29, v7')
    p.I('s_waitcnt lgkmcnt(0)')
    p.I('v_cmp_gt_u32 vcc, 13, v29')
    p.I('s_cbranch_vccz K2_OWNG')
    p.I('s_add_u32 s84, s84, 1')
    p.I('s_cmp_lt_u32 s84, 0x400000')
    p.I('s_cbranch_scc1 K2_OWNW')
    p.I('s_endpgm')
    p.label('K2_OWNG')
    for g in range(16):
        p.I(f'ds_write_b128 v{V_L16}, {vr(ACC+4*g,4)} offset:{g*1024}')
    p.I(f'v_mov_b32 v{V_DV}, 17')
    p.I(f'ds_write_b32 v{V_DA}, v{V_DV}')
    p.I('s_waitcnt lgkmcnt(0)')
    stamp(p, 4); stamp(p, 5); stamp(p, 6); stamp(p, 7, True)
    stamp_flush(p, 8, S_W, 0x40000, 8)
    p.I('s_endpgm')
    p.label('K2_FINAL')
    p.lds_q = []
    stamp(p, 2)
    p.I(f's_sub_u32 s14, s{S_W}, 4')
    p.I(f's_lshl_b32 s4, s{S_GRP}, 2')
    p.I(f's_add_u32 s4, s4, s{S_KQ}')
    p.I('s_lshl_b32 s5, s4, 7')
    p.I('s_lshl_b32 s4, s4, 16')
    p.I('s_lshl_b32 s6, s14, 12')
    p.I('s_add_u32 s4, s4, s6')
    p.I('v_lshlrev_b32 v7, 2, v2')
    p.I(f'v_cmp_ne_u32 s[56:57], s{S_KQ}, v2')
    p.I(f's_lshl_b32 s6, s{S_KQ}, 8')
    p.I(f's_add_u32 s6, s6, {FLG2+256}')
    p.I('v_mov_b32 v30, s6')
    p.label('K2_FW0')
    p.I('ds_read_b32 v29, v30')
    p.I('s_waitcnt lgkmcnt(0)')
    p.I('v_cmp_gt_u32 vcc, 16, v29')
    p.I('s_cbranch_vccz K2_FP')
    p.I('s_sleep 4')
    p.I('s_add_u32 s84, s84, 1')
    p.I('s_cmp_lt_u32 s84, 0x400000')
    p.I('s_cbranch_scc1 K2_FW0')
    p.I('s_endpgm')
    p.label('K2_FP')
    stamp(p, 3)
    p.label('K2_FP1')
    p.I(f'buffer_load_dword v29, v7, {sr(SRD_F,4)}, s5 offen sc1')
    p.I('s_waitcnt vmcnt(0)')
    p.I('v_cmp_ne_u32 vcc, 1, v29')
    p.I('s_and_b64 vcc, vcc, s[56:57]')
    p.I('s_cbranch_vccz K2_GO')
    p.I('s_sleep 2')
    p.I('s_add_u32 s84, s84, 1')
    p.I('s_cmp_lt_u32 s84, 0x400000')
    p.I('s_cbranch_scc1 K2_FP1')
    p.I('s_endpgm')
    p.label('K2_GO')
    stamp(p, 4)
    for k in range(1, 4):
        p.I(f's_add_u32 s6, s{S_KQ}, {k}')
        p.I('s_and_b32 s6, s6, 3')
        p.I('s_lshl_b32 s6, s6, 14')
        p.I('s_add_u32 s6, s6, s4')
        for g in range(4):
            p.I(f'buffer_load_dwordx4 {vr(ACC+16*k+4*g,4)}, v{V_L16}, {sr(SRD_P,4)}, s6 offen offset:{g*1024} sc1')
    p.label('K2_FW1')
    p.I('ds_read_b32 v29, v30')
    p.I('s_waitcnt lgkmcnt(0)')
    p.I('v_cmp_gt_u32 vcc, 17, v29')
    p.I('s_cbranch_vccz K2_FW2')
    p.I('s_add_u32 s84, s84, 1')
    p.I('s_cmp_lt_u32 s84, 0x400000')
    p.I('s_cbranch_scc1 K2_FW1')
    p.I('s_endpgm')
    p.label('K2_FW2')
    p.I('s_lshl_b32 s6, s14, 12')
    p.I(f'v_add_u32 v30, s6, v{V_L16}')
    for g in range(4):
        p.I(f'ds_read_b128 {vr(ACC+4*g,4)}, v30 offset:{g*1024}')
    p.I('s_movk_i32 s5, 1152')
    p.I('v_mul_lo_u32 v7, v6, s5')
    p.I('v_lshl_add_u32 v7, v5, 5, v7')
    p.I(f's_lshl_b32 s4, s{S_KQ}, 1')
    p.I('s_lshr_b32 s5, s14, 1')
    p.I('s_add_u32 s4, s4, s5')
    p.I('s_and_b32 s6, s14, 1')
    p.I(f's_cmp_ge_u32 s{S_IDX}, 28')
    p.I(f's_cselect_b32 s4, s4, s{S_KQ}')
    p.I('s_cselect_b32 s6, s6, s14')
    p.I('s_cmp_ge_u32 s4, 7')
    p.I('s_cbranch_scc1 K2_FIN')
    p.I(f's_add_u32 s4, s4, s{S_Q0}')
    p.I(f's_mul_i32 s4, s4, {32*1152}')
    p.I('s_lshl_b32 s6, s6, 6')
    p.I('s_add_u32 s4, s4, s6')
    p.I(f's_add_u32 s4, s4, s{S_N0}')
    p.I('s_waitcnt vmcnt(0)')
    stamp(p, 5)
    for r in range(16):
        p.I(f'v_add_f32 v{ACC+r}, v{ACC+r}, v{ACC+16+r}')
        p.I(f'v_add_f32 v{ACC+32+r}, v{ACC+32+r}, v{ACC+48+r}')
    for r in range(16): p.I(f'v_add_f32 v{ACC+r}, v{ACC+r}, v{ACC+32+r}')
    for r in range(8): p.I(f'v_cvt_pk_bf16_f32 v{40+r}, v{ACC+2*r}, v{ACC+2*r+1}')
    p.I(f'buffer_store_dwordx4 v[40:43], v7, {sr(SRD_OUT,4)}, s4 offen')
    p.I(f'buffer_store_dwordx4 v[44:47], v7, {sr(SRD_OUT,4)}, s4 offen offset:16')
    p.label('K2_FIN')
    if OPT['stamp']: p.I('s_waitcnt vmcnt(0)')
    stamp(p, 6); stamp(p, 7, True)
    stamp_flush(p, 8, S_W, 0x40000, 8)
    p.I('s_endpgm')
    p.auto = False
    for lab, ret in spins:
        p.label(lab)
        p.I(flag_read())
        p.I('s_waitcnt lgkmcnt(0)')
        p.I(f'v_cmp_gt_u32 vcc, s{S_NEED}, v{V_FV}')
        p.I(f's_cbranch_vccz {ret}')
        p.I('s_sleep 1')
        p.I('s_add_u32 s84, s84, 1')
        p.I('s_cmp_lt_u32 s84, 0x400000')
        p.I(f's_cbranch_scc1 {lab}')
        p.I('s_endpgm')
    p.auto = True
    p.label('K2_IDLE')
    p.I('s_barrier')
    p.I('s_branch K2_FINAL')
    p.label('K2_LOADER')
    p.lds_q = []
    VW, V_QA, V_QV, V_Z = 8, 20, 21, 23
    LW = OPT['lw2']
    p.I('v_min_u32 v7, 3, v0')
    p.I('v_lshlrev_b32 v7, 8, v7')
    p.I(f'v_add_u32 v{V_QA}, {FLG2+256}, v7')
    p.I(f'v_mov_b32 v{V_Z}, 0')
    p.I('s_lshl_b32 s15, s2, 8')
    S_WO, S_OO, S_SL = 56, 57, 58
    p.I(f's_mul_i32 s{S_WO}, s{S_KQ}, {1024*1152}')
    p.I(f's_add_u32 s{S_WO}, s{S_WO}, s{S_N0}')
    p.I(f's_lshl_b32 s{S_OO}, s{S_Q0}, 18')
    p.I(f's_lshl_b32 s4, s{S_KQ}, 16')
    p.I(f's_add_u32 s{S_OO}, s{S_OO}, s4')
    p.I(f's_mov_b32 s{S_SL}, 0')
    p.I(f's_lshr_b32 s4, s{S_IDX}, 2')
    p.I(f's_add_u32 s4, s4, s{S_IDX}')
    p.I(f's_and_b32 s4, s4, {OPT["rot2"]-1}')
    p.I(f's_mul_i32 s59, s4, {16 // OPT["rot2"]}')
    p.I(f's_mov_b32 s{S_I}, 0')
    p.I('s_movk_i32 s5, 1152')
    p.I(f's_cmp_ge_u32 s{S_IDX}, 28')
    p.I('s_cbranch_scc1 K2_L2')
    def lvariant(T):
        if T == 1:
            p.I('v_mul_lo_u32 v7, v3, s5')
            p.I('v_lshl_add_u32 v29, v4, 2, v2')
            p.I(f'v_lshl_add_u32 v{VW}, v29, 4, v7')
            for q in range(1, 4): p.I(f'v_add_u32 v{VW+q}, {q*(4*1152-1024)}, v{VW}')
            ngw, rows, nq, ooff = 4, 16, 4, 16384
        else:
            p.I('v_lshl_add_u32 v7, v5, 2, v3')
            p.I('v_mul_lo_u32 v7, v7, s5')
            p.I('v_and_b32 v29, 1, v4')
            p.I('v_lshl_add_u32 v29, v29, 2, v2')
            p.I(f'v_lshl_add_u32 v{VW}, v29, 4, v7')
            for q in range(1, 4): p.I(f'v_add_u32 v{VW+q}, {q*(8*1152-1024)}, v{VW}')
            ngw, rows, nq, ooff = 2, 32, 7, 8192
        p.label(f'K2_LL{T}')
        p.I(f's_cmp_lt_u32 s{S_I}, {NSL}')
        p.I(f's_cbranch_scc1 K2_LX{T}')
        p.I(f's_sub_u32 s6, s{S_I}, {NSL-1}')
        p.label(f'K2_LW{T}')
        p.I(f'ds_read_b32 v{V_QV}, v{V_QA}')
        p.I('s_waitcnt lgkmcnt(0)')
        p.I(f'v_cmp_gt_u32 vcc, s6, v{V_QV}')
        p.I(f's_cbranch_vccz K2_LX{T}')
        p.I('s_sleep 1')
        p.I('s_add_u32 s84, s84, 1')
        p.I('s_cmp_lt_u32 s84, 0x400000')
        p.I(f's_cbranch_scc1 K2_LW{T}')
        p.I('s_endpgm')
        p.label(f'K2_LX{T}')
        p.I(f's_mul_i32 s60, s59, {64*1152}')
        p.I(f's_add_u32 s60, s60, s{S_WO}')
        p.I('s_lshl_b32 s61, s59, 12')
        p.I(f's_add_u32 s61, s61, s{S_OO}')
        for g in range(max(ngw, nq)):
            if g < ngw:
                if LW < 63: p.I(f's_waitcnt vmcnt({LW})')
                p.I(f's_add_u32 m0, s{S_SL}, {g*4096}')
                p.I(f's_add_u32 s13, s60, {g*rows*1152}')
                for q in range(4):
                    p.I(f'buffer_load_dwordx4 v{VW+q}, {sr(SRD_WO,4)}, s13 offen offset:{q*1024} lds')
            if g < nq:
                if LW < 63: p.I(f's_waitcnt vmcnt({LW})')
                p.I(f's_add_u32 m0, s{S_SL}, {ooff + g*4096}')
                p.I(f's_add_u32 s13, s61, {g << 18}')
                for q in range(4):
                    p.I(f'buffer_load_dwordx4 v{V_L16}, {sr(SRD_O,4)}, s13 offen offset:{q*1024} lds')
        p.I(f's_cmp_lg_u32 s{S_I}, 0')
        p.I(f's_cbranch_scc1 K2_LB{T}')
        p.I('s_barrier')
        p.label(f'K2_LB{T}')
        p.I(f's_add_u32 s{S_I}, s{S_I}, 1')
        p.I(f's_mov_b32 m0, {FLG2}')
        p.I(f's_lshl_b32 s13, s{S_I}, 2')
        p.I('s_add_u32 s13, s13, s15')
        p.I(f'buffer_load_dword v{V_Z}, {sr(SRD_T,4)}, s13 offen lds')
        p.I('s_add_u32 s59, s59, 1')
        p.I('s_and_b32 s59, s59, 15')
        p.I(f's_add_u32 s{S_SL}, s{S_SL}, {SLOT}')
        p.I(f's_cmp_eq_u32 s{S_SL}, {NSL*SLOT}')
        p.I(f's_cselect_b32 s{S_SL}, 0, s{S_SL}')
        p.I(f's_cmp_lt_u32 s{S_I}, 16')
        p.I(f's_cbranch_scc1 K2_LL{T}')
        p.I('s_branch K2_FINAL')
    lvariant(1)
    p.label('K2_L2')
    lvariant(2)
    p.label('K2_END')
    p.I('s_endpgm')
    check_hazards(p.seq, 'k2')
    return p.text(), K2
```

```python
import sys
import gen6 as G
from gen6 import *
G.OPT.update(lw2=63, zf=1, rot2=4)
import p2
def main(out):
    t1, k1 = G.gen_k1()
    t2, k2 = p2.gen_k2()
    hdr = open('cdna_kernels/' + NAME + '.s.ref').read().split('; Override')[0]
    s = hdr
    s += f'; @launch kernel={k1} grid=(256,1,1) block=(512,1,1) lds=163840\n'
    s += f'; @launch kernel={k2} grid=(256,1,1) block=(512,1,1) lds={p2.FLG2 + 2048}\n'
    s += '.amdgcn_target "amdgcn-amd-amdhsa--gfx950"\n.text\n'
    s += t1 + t2
    s += '.section .rodata,"a"\n'
    s += kd(k1, 256, 100) + kd(k2, 256, 100)
    open(out, 'w').write(s)
if __name__ == '__main__':
    out = sys.argv[1]
    for a in sys.argv[2:]:
        k, v = a.split('=')
        G.OPT[k] = int(v) if v.lstrip('-').isdigit() else v.replace('+', ' ')
    main(out)
```

```python
import sys, struct
from asmlib import *

def f32(x): return '0x%08x' % struct.unpack('<I', struct.pack('<f', x))[0]
NAME = 'standalone__mha_block_cached__near_ridge'
SCALE = (128 ** -0.5) * 1.4426950408889634
THR = 8.0
X_BYTES = 8*224*576*2
KV_BYTES = 8*32*512*128*2
W_BYTES = 576*4096*2
T_OFF = 32 << 20
FO_OFF = 33 << 20
FP_OFF = FO_OFF + 65536
P_OFF = 40 << 20
WS_BYTES = 64 << 20

OPT = dict(xw=63, touch=99, skip=0, ofl='', osc=0, stamp=0, lw=12, skq=1, ska=2, pp='', pbf=0, slow=0, nochk=0, wowarm=1, wopre=1)

def vr(a, n=1): return f'v{a}' if n == 1 else f'v[{a}:{a+n-1}]'
def sr(a, n=1): return f's{a}' if n == 1 else f's[{a}:{a+n-1}]'
MF = 'v_mfma_f32_32x32x16_bf16'

XS = [126976, 32768, 61440]
WSL = [16384, 110592, 94208]
FLG = 90112
VTOP = 163840
NVS = 8
HO = 57344

S_W, S_B, S_H, S_I, S_KS = 3, 8, 9, 10, 11
SRD_X, SRD_WQ, SRD_K, SRD_V, SRD_WS, SRD_WO, SRD_OUT, SRD_DBG = 32, 36, 40, 44, 48, 52, 56, 60
S_SPIN = 84
S_G, S_KQ, S_IDX, S_GRP, S_Q0, S_N0 = 92, 93, 94, 95, 96, 97
SPIN_MAX = 0x200000

def gen():
    p = Prog(); p.nlab = 0
    KN = NAME + '_kernel'
    def lab(pre):
        p.nlab += 1; return f'{pre}{p.nlab}'
    def srd(dst, lo, nbytes):
        p.I(f's_mov_b32 s{dst}, s{lo}'); p.I(f's_mov_b32 s{dst+1}, s{lo+1}')
        p.I(f's_mov_b32 s{dst+2}, {nbytes}'); p.I(f's_mov_b32 s{dst+3}, 0x00020000')
    def stamp(k, real=False):
        if not OPT['stamp']: return
        p.I('s_waitcnt lgkmcnt(0)')
        p.I(f's_memrealtime s[{64+2*k}:{65+2*k}]' if real else f's_memtime s[{64+2*k}:{65+2*k}]')
        p.I('s_waitcnt lgkmcnt(0)')
    def finish():
        if OPT['stamp']:
            p.I('s_waitcnt vmcnt(0)')
            stamp(8); stamp(9, True)
            p.I('s_lshl_b32 s4, s2, 3')
            p.I(f's_add_u32 s4, s4, s{S_W}')
            p.I('s_lshl_b32 s4, s4, 6')
            p.I(f's_add_u32 s4, s4, {64<<20}')
            p.I('v_mov_b32 v1, 0')
            for k in range(10):
                p.I(f'v_mov_b32 v2, s{64+2*k}')
                p.I(f'buffer_store_dword v2, v1, {sr(SRD_WS,4)}, s4 offen offset:{4*k}')
        p.I('s_endpgm')
    def spin_tail(back, sleep=1):
        if sleep: p.I(f's_sleep {sleep}')
        p.I(f's_add_u32 s{S_SPIN}, s{S_SPIN}, 1')
        p.I(f's_cmp_lt_u32 s{S_SPIN}, {SPIN_MAX}')
        p.I(f's_cbranch_scc1 {back}')
        p.I('s_endpgm')
    def interleave(mfmas, fillers):
        n = len(mfmas); fi = 0; rem = len(fillers)
        for k, m in enumerate(mfmas):
            p.I(m)
            for _ in range((rem * (k + 1)) // n - (rem * k) // n):
                p.I(fillers[fi]); fi += 1
    def grp(m, f, per):
        fi = 0
        for k, mm in enumerate(m):
            p.I(mm)
            for _ in range(per if k < len(m) - 1 else len(f)):
                if fi < len(f): p.I(f[fi]); fi += 1

    p.raw(f'.globl {KN}\n.p2align 8\n.type {KN},@function\n{KN}:')
    p.I('s_cmp_ge_u32 s2, 256')
    p.I('s_cbranch_scc1 L_END')
    p.I('s_load_dwordx16 s[16:31], s[0:1], 0')
    p.I('v_lshrrev_b32 v1, 6, v0')
    p.I('v_and_b32 v0, 63, v0')
    p.I(f'v_readfirstlane_b32 s{S_W}, v1')
    p.I(f's_mov_b32 s{S_SPIN}, 0')
    p.I(f's_and_b32 s{S_G}, s2, 7')
    p.I(f's_lshr_b32 s{S_IDX}, s2, 3')
    p.I('s_and_b32 s6, s2, 1')
    p.I(f's_and_b32 s7, s{S_IDX}, 3')
    p.I('s_lshl_b32 s4, s6, 2')
    p.I(f's_add_u32 s{S_B}, s4, s7')
    p.I(f's_lshr_b32 s{S_KQ}, s{S_G}, 1')
    p.I(f's_lshr_b32 s5, s{S_IDX}, 2')
    p.I(f's_lshl_b32 s4, s{S_KQ}, 3')
    p.I(f's_add_u32 s{S_H}, s4, s5')
    p.I('s_add_u32 s4, s5, s7')
    p.I('s_mul_i32 s13, s4, 86')
    p.I('s_lshr_b32 s13, s13, 8')
    p.I('s_mul_i32 s13, s13, 3')
    p.I('s_sub_u32 s4, s4, s13')
    p.I(f's_mul_i32 s{S_KS}, s4, 3')
    p.I(f's_lshl_b32 s{S_GRP}, s6, 5')
    p.I(f's_add_u32 s{S_GRP}, s{S_GRP}, s{S_IDX}')
    p.I(f's_and_b32 s4, s{S_IDX}, 0xfc')
    p.I(f's_sub_u32 s5, s{S_IDX}, 28')
    p.I('s_mul_i32 s5, s5, 7')
    p.I('s_lshl_b32 s7, s7, 8')
    p.I(f's_cmp_ge_u32 s{S_IDX}, 28')
    p.I(f's_cselect_b32 s{S_Q0}, s5, s4')
    p.I(f's_cselect_b32 s{S_N0}, 1024, s7')
    p.I('v_and_b32 v2, 3, v0')
    p.I('v_bfe_u32 v3, v0, 2, 2')
    p.I('v_lshrrev_b32 v4, 4, v0')
    p.I('v_lshrrev_b32 v5, 5, v0')
    p.I('v_and_b32 v6, 31, v0')
    V_FA, V_DA, V_FV, V_DV, V_L16, V_L4 = 32, 33, 34, 35, 36, 37
    p.I(f'v_lshlrev_b32 v{V_L16}, 4, v0')
    p.I(f'v_lshlrev_b32 v{V_L4}, 2, v0')
    p.I(f'v_add_u32 v{V_FA}, {FLG}, v{V_L4}')
    p.I(f's_add_u32 s4, s{S_W}, 1')
    p.I('s_and_b32 s4, s4, 7')
    p.I('s_lshl_b32 s4, s4, 8')
    p.I(f'v_add_u32 v{V_DA}, s4, v{V_FA}')
    p.I(f's_sub_u32 s4, s{S_W}, 4')
    p.I('s_cmp_lt_u32 s4, 3')
    p.I('s_cselect_b32 s4, 9, 0')
    p.I(f'v_mov_b32 v{V_DV}, s4')
    p.I(f'ds_write_b32 v{V_DA}, v{V_DV}')
    p.I('v_mov_b32 v7, 0')
    p.I(f'ds_write_b32 v{V_FA}, v7 offset:2048')
    p.I('s_waitcnt lgkmcnt(0)')
    srd(SRD_X, 16, X_BYTES); srd(SRD_K, 18, KV_BYTES); srd(SRD_V, 20, KV_BYTES); srd(SRD_WQ, 22, W_BYTES)
    srd(SRD_WO, 24, W_BYTES); srd(SRD_OUT, 26, X_BYTES); srd(SRD_DBG, 28, 256)
    srd(SRD_WS, 30, (128 << 20) if OPT['stamp'] else WS_BYTES)
    p.I('s_lshl_b32 s15, s2, 8')
    p.I(f's_add_u32 s15, s15, {T_OFF}')
    if OPT['stamp']:
        for k in range(2, 8): p.I(f's_mov_b32 s{64+2*k}, 0')
    stamp(0, True); stamp(1)
    p.I(f's_cmp_eq_u32 s{S_W}, 7')
    p.I('s_cbranch_scc1 L_LOADER')

    V_XA0, V_XA1, V_WL, V_WA, V_XL0, V_XL1 = 10, 11, 12, 13, 14, 15
    V_KL0, V_KL1, V_VL, V_KA0, V_KA1, V_VA = 16, 17, 18, 19, 20, 21
    V_L0, V_L1, V_MX, V_T0, V_TH, V_SK = 22, 23, 24, 25, 27, 28
    KF, VF, PP, QF, NEGM, S0, S1, OA = 40, 72, 104, 112, 144, 160, 176, 192
    S_NEED = 85
    spins = []
    def flag_read(): return f'ds_read_b32 v{V_FV}, v{V_FA}'
    def flag_check():
        l, r = lab('L_SPIN'), lab('L_SRET')
        spins.append((l, r))
        p.I(f'v_cmp_gt_i32 vcc, v{V_TH}, v{V_FV}')
        p.I(f's_cbranch_vccnz {l}')
        p.label(r)
    def release():
        return [f'v_mov_b32 v{V_DV}, s{S_NEED}', f'ds_write_b32 v{V_DA}, v{V_DV}', f's_add_u32 s{S_NEED}, s{S_NEED}, 1', f'v_add_u32 v{V_TH}, 1, v{V_TH}']
    p.I('v_add_u32 v7, 1, v0')
    p.I('v_lshlrev_b32 v7, 8, v7')
    p.I(f'v_add_u32 v7, {FLG}, v7')
    p.I('v_cmp_gt_u32 vcc, 7, v0')
    p.I(f'v_cndmask_b32 v{V_FA}, v{V_FA}, v7, vcc')
    p.I(f'v_cndmask_b32 v{V_SK}, 0, 1, vcc')
    p.I(f'v_mul_u32_u24 v7, {OPT["skq"]+1}, v{V_SK}')
    p.I(f'v_sub_u32 v{V_TH}, 1, v7')
    p.I('v_and_b32 v29, 1, v4')
    p.I('v_lshlrev_b32 v7, 10, v5')
    p.I('v_lshl_add_u32 v7, v3, 6, v7')
    p.I('v_lshl_add_u32 v7, v29, 5, v7')
    p.I(f'v_lshl_add_u32 v{V_VL}, v2, 3, v7')
    p.I('v_lshrrev_b32 v7, 2, v6')
    p.I('v_lshlrev_b32 v7, 10, v7')
    p.I('v_lshl_add_u32 v7, v2, 6, v7')
    p.I(f'v_xor_b32 v{V_KL0}, v5, v3')
    p.I(f'v_lshl_add_u32 v{V_KL0}, v{V_KL0}, 4, v7')
    p.I(f'v_xor_b32 v{V_KL1}, 32, v{V_KL0}')
    p.I(f'v_mov_b32 v{V_FV}, 0')
    EA = 144
    WS = [40, 56]; XSET = [72, 88]
    def kreads(dst, a0, a1, off):
        return [f'ds_read_b128 {vr(dst+4*s2,4)}, v{a1 if s2&1 else a0} offset:{off+(s2>>1)*256}' for s2 in range(8)]
    K0F = VF
    qk0 = [f'{MF} {vr(S0,16)}, {vr(K0F+4*s2,4)}, {vr(QF+4*s2,4)}, {"0" if s2 == 0 else vr(S0,16)}' for s2 in range(8)]
    p.I(f's_cmp_ge_u32 s{S_W}, 4')
    p.I('s_cbranch_scc1 L_QWAIT')
    p.I('v_lshrrev_b32 v7, 3, v6')
    p.I('v_lshlrev_b32 v7, 10, v7')
    p.I('v_and_b32 v30, 1, v3')
    p.I('v_lshl_add_u32 v7, v30, 8, v7')
    p.I('v_lshl_add_u32 v7, v2, 6, v7')
    p.I(f'v_xor_b32 v{V_XL0}, v5, v3')
    p.I(f'v_lshl_add_u32 v{V_XL0}, v{V_XL0}, 4, v7')
    p.I(f's_lshl_b32 s4, s{S_W}, 12')
    p.I(f'v_add_u32 v{V_XL0}, s4, v{V_XL0}')
    p.I(f'v_xor_b32 v{V_XL1}, 32, v{V_XL0}')
    p.I('v_lshlrev_b32 v7, 11, v5')
    p.I('v_lshl_add_u32 v7, v3, 6, v7')
    p.I('v_lshl_add_u32 v7, v29, 5, v7')
    p.I('v_and_b32 v30, 1, v2')
    p.I(f'v_lshl_add_u32 v{V_WL}, v30, 4, v7')
    p.I('v_lshrrev_b32 v30, 1, v2')
    p.I(f'v_lshl_add_u32 v{V_WL}, v30, 3, v{V_WL}')
    p.I(f's_mov_b32 s{S_I}, 0')
    p.I(f's_mov_b32 s{S_NEED}, 1')
    for k in range(3):
        p.I(f's_mov_b32 s{86+k}, {XS[k]}')
        p.I(f's_mov_b32 s{89+k}, {WSL[k]}')
    for r in range(64): p.I(f'v_mov_b32 v{OA+r}, 0')
    for r in range(48): p.I(f'v_mov_b32 v{EA+r}, 0')
    for r in range(16): p.I(f'v_mov_b32 v{WS[1]+r}, 0')
    for r in range(16): p.I(f'v_mov_b32 v{XSET[1]+r}, 0')
    p.I(f's_lshl_b32 s4, s{S_W}, 13')
    p.I(f's_cmp_eq_u32 s{S_W}, 3')
    p.I('s_cselect_b32 s4, 6144, s4')
    p.I('s_cselect_b32 s5, 4, 1')
    p.I('s_lshl_b32 s5, s5, 11')
    p.I(f's_add_u32 s4, s4, {HO}')
    p.I(f'v_add_u32 v29, s4, v{V_L16}')
    p.I('v_add_u32 v30, s5, v29')
    p.I('v_add_u32 v31, s5, v30')
    p.I('s_barrier')
    p.I(f's_cmp_eq_u32 s{S_W}, 3')
    p.I('s_cbranch_scc1 L_QLOOPB')
    def qvariant(V):
        nx = 2 if V == 'A' else 4
        def reads(s):
            X = XSET[s & 1]; W = WS[s & 1]
            x = [f'ds_read_b128 {vr(X+4*j,4)}, v{V_XA1 if s&1 else V_XA0} offset:{(s>>1)*512 + (16384*j if V == "A" else 4096*j)}' for j in range(nx)]
            w = [f'ds_read_b64_tr_b16 {vr(W+4*t+2*u,2)}, v{V_WA} offset:{s*4096+u*1024+t*256}' for t in range(4) for u in range(2)]
            return [x[0]] + w[:2] + x[1:2] + w[2:] + x[2:]
        def qm(s, ext_first=False):
            W = WS[s & 1]; X = XSET[s & 1]
            own = [f'{MF} {vr(OA+16*t,16)}, {vr(W+4*t,4)}, {vr(X,4)}, {vr(OA+16*t,16)}' for t in range(4)]
            if V == 'A': ext = [f'{MF} {vr(EA+16*e,16)}, {vr(W+4*e,4)}, {vr(X+4,4)}, {vr(EA+16*e,16)}' for e in range(3)]
            else: ext = [f'{MF} {vr(EA+16*e,16)}, {vr(W+12,4)}, {vr(X+4+4*e,4)}, {vr(EA+16*e,16)}' for e in range(3)]
            if ext_first: return ext + own
            if V == 'A': return [own[0], ext[0], own[1], ext[1], own[2], ext[2], own[3]]
            return own + ext
        st = len(p.seq)
        p.label(f'L_QLOOP{V}')
        p.I(f'v_add_u32 v{V_WA}, s89, v{V_WL}')
        p.I(f'v_add_u32 v{V_XA0}, s86, v{V_XL0}')
        p.I(f'v_add_u32 v{V_XA1}, s86, v{V_XL1}')
        flag_check()
        grp(qm(3), reads(0), 2)
        grp(qm(0), reads(1), 2)
        grp(qm(1), reads(2) + ['s_mov_b32 s4, s86', 's_mov_b32 s86, s87', 's_mov_b32 s87, s88', 's_mov_b32 s88, s4'], 2)
        m = qm(2)
        grp(m[:-1], reads(3) + release() + [flag_read(), 's_mov_b32 s4, s89', 's_mov_b32 s89, s90', 's_mov_b32 s90, s91', 's_mov_b32 s91, s4',
                                                        f's_add_u32 s{S_I}, s{S_I}, 1', f's_cmp_lt_u32 s{S_I}, 9'], 3)
        p.I(m[-1])
        p.I('s_waitcnt lgkmcnt(0)')
        p.I(f's_cbranch_scc1 L_QLOOP{V}')
        b = p.seq[st:]
        check_hazards(b + b, 'qloop' + V)
        for i in qm(3, True): p.I(i)
    qvariant('A')
    p.I('s_branch L_QDONE')
    qvariant('B')
    p.label('L_QDONE')
    stamp(2)
    p.I(f'v_sub_u32 v{V_TH}, 10, v{V_SK}')
    flag_check()
    p.I(f'v_mul_u32_u24 v7, {OPT["ska"]+1}, v{V_SK}')
    p.I(f'v_sub_u32 v{V_TH}, 10, v7')
    for i in kreads(K0F, V_KL0, V_KL1, 0): p.I(i)
    p.I(f's_mov_b32 s4, {f32(SCALE)}')
    for e in range(3):
        for r in range(16): p.I(f'v_mul_f32 v{EA+16*e+r}, s4, v{EA+16*e+r}')
        for r in range(8): p.I(f'v_cvt_pk_bf16_f32 v{EA+16*e+r}, v{EA+16*e+2*r}, v{EA+16*e+2*r+1}')
        p.I(f'ds_write_b128 v{29+e}, {vr(EA+16*e,4)}')
        p.I(f'ds_write_b128 v{29+e}, {vr(EA+16*e+4,4)} offset:1024')
    for i in kreads(KF, V_KL0, V_KL1, 8192) + release() + [flag_read()]: p.I(i)
    for t in range(4):
        for h in range(2):
            for r in range(8): p.I(f'v_mul_f32 v{OA+16*t+8*h+r}, s4, v{OA+16*t+8*h+r}')
            for r in range(4): p.I(f'v_cvt_pk_bf16_f32 v{QF+8*t+4*h+r}, v{OA+16*t+8*h+2*r}, v{OA+16*t+8*h+2*r+1}')
            if 2*t+h >= 1: p.I(qk0[2*t+h-1])
    p.I(qk0[7])
    p.I('s_branch L_ATT')
    p.label('L_QWAIT')
    p.lds_q = []
    p.I(f's_cmp_lg_u32 s{S_W}, 4')
    p.I('s_cbranch_scc1 L_HK1')
    p.I(f'buffer_store_dword v0, v{V_L4}, {sr(SRD_WS,4)}, s15 offen')
    p.I('s_waitcnt vmcnt(0)')
    p.label('L_HK1')
    p.I('s_barrier')
    p.I(f's_cmp_lg_u32 s{S_W}, 5')
    p.I('s_cbranch_scc1 L_HK2')
    p.I('v_min_u32 v7, 6, v0')
    p.I('v_lshlrev_b32 v7, 7, v7')
    p.I(f's_mul_i32 s4, s{S_G}, 28')
    p.I(f's_and_b32 s5, s{S_IDX}, 3')
    p.I('s_mul_i32 s5, s5, 7')
    p.I('s_add_u32 s4, s4, s5')
    p.I('s_lshl_b32 s4, s4, 7')
    p.I(f's_and_b32 s5, s{S_IDX}, 0xfc')
    p.I('s_add_u32 s4, s4, s5')
    p.I(f's_add_u32 s4, s4, {FO_OFF}')
    p.I('v_mov_b32 v29, 0')
    p.I(f'buffer_store_dword v29, v7, {sr(SRD_WS,4)}, s4 offen sc1')
    p.I('v_lshlrev_b32 v7, 7, v2')
    p.I(f's_lshl_b32 s4, s{S_GRP}, 9')
    p.I(f's_lshl_b32 s5, s{S_KQ}, 2')
    p.I('s_add_u32 s4, s4, s5')
    p.I(f's_add_u32 s4, s4, {FP_OFF}')
    p.I(f'buffer_store_dword v29, v7, {sr(SRD_WS,4)}, s4 offen sc1')
    p.I('s_getreg_b32 s5, hwreg(HW_REG_XCC_ID, 0, 4)')
    p.I('s_add_u32 s5, s5, 1')
    p.I('v_mov_b32 v30, s5')
    p.I(f's_lshl_b32 s4, s{S_G}, 5')
    p.I(f's_add_u32 s4, s4, s{S_IDX}')
    p.I('s_waitcnt vmcnt(0)')
    p.I(f'buffer_store_byte v30, v29, {sr(SRD_DBG,4)}, s4 offen sc1')
    p.label('L_HK2')
    p.I(f's_cmp_lg_u32 s{S_W}, 6')
    p.I('s_cbranch_scc1 L_HK3')
    p.I('s_sleep 64')
    p.I(f's_lshl_b32 s4, s{S_G}, 5')
    p.I('v_add_u32 v7, s4, v6')
    p.I('s_and_b32 s5, s2, 1')
    p.I('s_lshl_b32 s5, s5, 5')
    p.I(f's_add_u32 s5, s5, s{S_IDX}')
    p.I('v_lshl_add_u32 v29, v2, 6, s5')
    p.I('v_cmp_gt_u32 vcc, 32, v0')
    p.I('v_cndmask_b32 v7, v29, v7, vcc')
    p.label('L_REG')
    p.I(f'buffer_load_ubyte v29, v7, {sr(SRD_DBG,4)}, 0 offen sc1')
    if OPT['wowarm']:
        pass
    p.I('s_waitcnt vmcnt(0)')
    p.I('v_cmp_eq_u32 vcc, 0, v29')
    p.I('s_cbranch_vccz L_REGOK')
    spin_tail('L_REG', 32)
    p.label('L_REGOK')
    p.I('s_getreg_b32 s5, hwreg(HW_REG_XCC_ID, 0, 4)')
    p.I('s_add_u32 s5, s5, 1')
    p.I('v_cmp_ne_u32 vcc, s5, v29')
    p.I('s_cmp_eq_u32 vcc_lo, 0')
    p.I(f's_cselect_b32 s5, {1 if OPT["slow"] else 2}, 1')
    p.I('v_mov_b32 v29, s5')
    p.I(f'v_add_u32 v7, {FLG}, v{V_L4}')
    p.I('ds_write_b32 v7, v29 offset:2048')
    p.label('L_HK3')
    p.I(f's_mov_b32 s{S_NEED}, 10')
    p.I('v_cmp_gt_u32 vcc, 4, v0')
    p.I(f'v_cndmask_b32 v7, v{V_SK}, 0, vcc')
    p.I(f'v_sub_u32 v{V_TH}, 10, v7')
    p.I(f's_sub_u32 s4, s{S_W}, 4')
    p.I('s_lshl_b32 s4, s4, 13')
    p.I(f's_add_u32 s4, s4, {HO}')
    p.I(f'v_add_u32 v29, s4, v{V_L16}')
    flag_check()
    stamp(2)
    kr = kreads(K0F, V_KL0, V_KL1, 0)
    for s2 in range(8):
        p.I(f'ds_read_b128 {vr(QF+4*s2,4)}, v29 offset:{s2*1024}')
        p.I(kr[s2])
    p.I(f'v_mul_u32_u24 v7, {OPT["ska"]+1}, v{V_SK}')
    p.I(f'v_sub_u32 v{V_TH}, 10, v7')
    interleave(qk0, kreads(KF, V_KL0, V_KL1, 8192) + release() + [flag_read()])
    p.label('L_ATT')
    p.lds_q = []
    for r in range(64): p.I(f'v_mov_b32 v{OA+r}, 0')
    p.I(f'v_mov_b32 v{V_L0}, 0')
    p.I(f'v_mov_b32 v{V_L1}, 0')
    def maxtree(S):
        return [f'v_max3_f32 v{V_MX}, v{S}, v{S+1}, v{S+2}', f'v_max3_f32 v{V_T0}, v{S+3}, v{S+4}, v{S+5}',
             f'v_max3_f32 v{V_MX}, v{V_MX}, v{S+6}, v{S+7}', f'v_max3_f32 v{V_T0}, v{V_T0}, v{S+8}, v{S+9}',
             f'v_max3_f32 v{V_MX}, v{V_MX}, v{S+10}, v{S+11}', f'v_max3_f32 v{V_T0}, v{V_T0}, v{S+12}, v{S+13}',
             f'v_max3_f32 v{V_MX}, v{V_MX}, v{S+14}, v{S+15}', f'v_max_f32 v{V_MX}, v{V_MX}, v{V_T0}']
    for i in maxtree(S0): p.I(i)
    p.I(f'v_mov_b32 v{V_T0}, v{V_MX}')
    p.I(f'v_permlane32_swap_b32 v{V_MX}, v{V_T0}')
    p.I(f'v_max_f32 v{V_MX}, v{V_MX}, v{V_T0}')
    for r in range(16):
        p.I(f'v_sub_f32 v{S0+r}, v{S0+r}, v{V_MX}')
        p.I(f'v_sub_f32 v{NEGM+r}, 0, v{V_MX}')
    S_KB, S_VB, S_THR = 86, 87, 88
    p.I(f's_mov_b32 s{S_I}, 0')
    p.I(f's_mov_b32 s{S_KB}, 16384')
    p.I(f's_mov_b32 s{S_VB}, {VTOP-16384}')
    p.I(f's_mov_b32 s{S_THR}, {"0x7f800000" if OPT["nochk"] else f32(THR)}')
    p.I('s_waitcnt lgkmcnt(0)')
    rare = []
    def phaseA(Scur, Snext, voff, do_qk):
        flag_check()
        m = [f'{MF} {vr(Snext,16)}, {vr(KF+4*s2,4)}, {vr(QF+4*s2,4)}, {vr(NEGM,16) if s2 == 0 else vr(Snext,16)}' for s2 in range(8)]
        rd = [f'ds_read_b64_tr_b16 {vr(VF+16*s+4*t+2*u,2)}, v{V_VA} offset:{voff+s*4096+u*2048+t*256}' for s in range(2) for t in range(4) for u in range(2)]
        f = []
        for k in range(8):
            f += [rd[2*k], rd[2*k+1], f'v_exp_f32 v{Scur+2*k}, v{Scur+2*k}', f'v_exp_f32 v{Scur+2*k+1}, v{Scur+2*k+1}']
            if k > 0: f.append(f'v_cvt_pk_bf16_f32 v{PP+k-1}, v{Scur+2*k-2}, v{Scur+2*k-1}')
        f.append(f'v_cvt_pk_bf16_f32 v{PP+7}, v{Scur+14}, v{Scur+15}')
        if do_qk: interleave(m, f)
        else:
            for i in f: p.I(i)
    def phaseB(Scur, Snext, koff, do_k, do_chk, more):
        m = [f'{MF} {vr(OA+16*t,16)}, {vr(VF+16*s+4*t,4)}, {vr(PP+4*s,4)}, {vr(OA+16*t,16)}' for s in range(2) for t in range(4)]
        rd = kreads(KF, V_KA0, V_KA1, koff) if do_k else []
        adds = [f'v_add_f32 v{V_L0 + (r&1)}, v{V_L0 + (r&1)}, v{Scur+r}' for r in range(16)]
        f = []
        for k in range(8):
            if rd and k < 4: f += [rd[2*k], rd[2*k+1]]
            if k == (4 if rd else 0): f += release() + ([flag_read()] if more else [f'ds_read_b32 v{V_FV}, v{V_L4} offset:0'][:0])
            f += [adds[2*k], adds[2*k+1]]
        if do_chk: f += maxtree(Snext)
        interleave(m, f)
        if do_chk:
            l, r = lab('L_RARE'), lab('L_RRET')
            rare.append((l, r, Snext))
            p.I(f'v_cmp_lt_f32 vcc, s{S_THR}, v{V_MX}')
            p.I(f's_cbranch_vccnz {l}')
            p.label(r)
    def body(last):
        p.I(f'v_add_u32 v{V_VA}, s{S_VB}, v{V_VL}')
        if not last:
            p.I(f'v_add_u32 v{V_KA0}, s{S_KB}, v{V_KL0}')
            p.I(f'v_add_u32 v{V_KA1}, s{S_KB}, v{V_KL1}')
        pp = str(OPT['pp'])[1:]
        if pp: p.I(f's_setprio {pp[0]}')
        phaseA(S0, S1, 8192, True)
        if pp: p.I(f's_setprio {pp[1]}')
        phaseB(S0, S1, 0, not last, True, True)
        if pp: p.I(f's_setprio {pp[2]}')
        phaseA(S1, S0, 0, not last)
        if pp: p.I(f's_setprio {pp[3]}')
        phaseB(S1, S0, 8192, not last, not last, not last)
    stamp(3)
    st = len(p.seq)
    p.label('L_ALOOP')
    body(False)
    p.I(f's_add_u32 s{S_KB}, s{S_KB}, 16384')
    p.I(f's_cmp_eq_u32 s{S_KB}, 81920')
    p.I(f's_cselect_b32 s{S_KB}, 0, s{S_KB}')
    p.I(f's_sub_u32 s{S_VB}, s{S_VB}, 16384')
    p.I(f's_cmp_eq_u32 s{S_VB}, {VTOP - NVS*8192 - 16384}')
    p.I(f's_cselect_b32 s{S_VB}, {VTOP-16384}, s{S_VB}')
    p.I(f's_add_u32 s{S_I}, s{S_I}, 1')
    p.I(f's_cmp_lt_u32 s{S_I}, 7')
    p.I('s_waitcnt lgkmcnt(0)')
    p.I('s_cbranch_scc1 L_ALOOP')
    b = p.seq[st:]
    check_hazards(b + b, 'aloop')
    body(True)
    if OPT['pp']: p.I('s_setprio 0')
    stamp(4)
    p.I(f'v_add_u32 v{V_FA}, {FLG}, v{V_L4}')
    p.I(f'ds_read_b32 v{V_FV}, v{V_FA} offset:2048')
    p.I(f'v_add_f32 v{V_L0}, v{V_L0}, v{V_L1}')
    p.I(f'v_mov_b32 v{V_T0}, v{V_L0}')
    p.I(f'v_permlane32_swap_b32 v{V_L0}, v{V_T0}')
    p.I(f'v_add_f32 v{V_L0}, v{V_L0}, v{V_T0}')
    p.I(f'v_rcp_f32 v{V_L0}, v{V_L0}')
    p.I(f's_mul_i32 s6, s{S_G}, 28')
    p.I(f's_and_b32 s7, s{S_IDX}, 3')
    p.I('s_mul_i32 s7, s7, 7')
    p.I('s_add_u32 s6, s6, s7')
    p.I(f's_add_u32 s6, s6, s{S_W}')
    p.I('s_lshl_b32 s4, s6, 16')
    p.I(f's_and_b32 s7, s{S_IDX}, 0xfc')
    p.I('s_lshl_b32 s5, s7, 11')
    p.I('s_add_u32 s4, s4, s5')
    p.I('s_add_u32 s5, s4, 4096')
    p.I('s_lshl_b32 s6, s6, 7')
    p.I('s_add_u32 s6, s6, s7')
    p.I(f's_add_u32 s6, s6, {FO_OFF}')
    p.label('L_MODEW')
    p.I(f'v_cmp_ne_u32 vcc, 0, v{V_FV}')
    p.I('s_cbranch_vccnz L_MODEG')
    p.I(f'ds_read_b32 v{V_FV}, v{V_FA} offset:2048')
    p.I('s_waitcnt lgkmcnt(0)')
    spin_tail('L_MODEW')
    p.label('L_MODEG')
    p.I(f'v_cmp_eq_u32 vcc, 2, v{V_FV}')
    p.I('v_mov_b32 v7, 0'); p.I('v_mov_b32 v29, 1')
    p.I('s_cbranch_vccz L_OSLOW')
    def ostore(fl):
        for t in range(4):
            for r in range(16): p.I(f'v_mul_f32 v{OA+16*t+r}, v{OA+16*t+r}, v{V_L0}')
            for r in range(8): p.I(f'v_cvt_pk_bf16_f32 v{QF+8*t+r}, v{OA+16*t+2*r}, v{OA+16*t+2*r+1}')
            for s in range(2):
                f = 2*t+s
                if not OPT['skip'] & 4: p.I(f'buffer_store_dwordx4 {vr(QF+8*t+4*s,4)}, v{V_L16}, {sr(SRD_WS,4)}, s{4 if f<4 else 5} offen offset:{(f&3)*1024}{fl or (" " + OPT["ofl"])}')
        p.I('s_waitcnt vmcnt(0)')
        p.I(f'buffer_store_dword v29, v7, {sr(SRD_WS,4)}, s6 offen{fl}')
    ostore('')
    p.I('s_branch L_P2')
    p.label('L_OSLOW')
    ostore(' sc1')
    p.label('L_P2')
    stamp(5)
    p.I(f's_cmp_ge_u32 s{S_W}, 4')
    p.I('s_cbranch_scc1 L_P2IDLE')
    ACC = 192
    AS = [40, 56]; BS = [72, 80]
    V_AL, V_BL, V_AA, V_BA = 10, 11, 12, 13
    S_SA, S_SB = 86, 87
    for r in range(64): p.I(f'v_mov_b32 v{ACC+r}, 0')
    for r in range(16): p.I(f'v_mov_b32 v{AS[1]+r}, 0')
    for r in range(8): p.I(f'v_mov_b32 v{BS[1]+r}, 0')
    p.I('v_and_b32 v7, 1, v2')
    p.I('v_lshlrev_b32 v7, 5, v7')
    p.I('v_and_b32 v29, 1, v4')
    p.I('v_lshl_add_u32 v7, v29, 4, v7')
    p.I('v_lshrrev_b32 v30, 1, v2')
    p.I('v_lshl_add_u32 v7, v30, 3, v7')
    p.I('v_lshl_add_u32 v7, v3, 6, v7')
    p.I(f'v_mov_b32 v{V_TH}, 27')
    p.I(f'v_mov_b32 v{V_FV}, 0')
    p.I(f's_mov_b32 s{S_I}, 0')
    p.I(f's_cmp_ge_u32 s{S_IDX}, 28')
    p.I('s_cbranch_scc1 L_P2T2')
    RG = {1: dict(a0=49152, astep=16384, aend=81920, awrap=0, b0=98304, bstep=16384, bend=163840, na=5, nb=4),
          2: dict(a0=VTOP-8192, astep=-8192, aend=VTOP-9*8192, awrap=VTOP-8192, b0=0, bstep=28672, bend=86016, na=8, nb=3)}
    def adv(sreg, step, end, wrap):
        l = [f's_add_u32 s{sreg}, s{sreg}, {step}' if step > 0 else f's_sub_u32 s{sreg}, s{sreg}, {-step}',
             f's_cmp_eq_u32 s{sreg}, {end}', f's_cselect_b32 s{sreg}, {wrap}, s{sreg}']
        return l
    def variant(T):
        R = RG[T]
        p.I(f'v_lshl_add_u32 v{V_AL}, v5, {10 if T == 1 else 9}, v7')
        p.I(f's_lshl_b32 s4, s{S_W}, {12 if T == 1 else 13}')
        p.I(f'v_add_u32 v{V_BL}, s4, v{V_L16}')
        p.I(f's_mov_b32 s{S_SA}, {R["a0"]}')
        p.I(f's_mov_b32 s{S_SB}, {R["b0"]}')
        def reads(s):
            A = AS[s & 1]; B = BS[s & 1]
            if T == 1:
                a = [f'ds_read_b64_tr_b16 {vr(A+4*t+2*u,2)}, v{V_AA} offset:{s*4096+u*2048+t*256}' for t in range(4) for u in range(2)]
                b = [f'ds_read_b128 {vr(B,4)}, v{V_BA} offset:{s*1024}']
            else:
                a = [f'ds_read_b64_tr_b16 {vr(A+4*t+2*u,2)}, v{V_AA} offset:{s*2048+u*1024+t*256}' for t in range(2) for u in range(2)]
                b = [f'ds_read_b128 {vr(B+4*q,4)}, v{V_BA} offset:{s*1024+q*4096}' for q in range(2)]
            return b[:1] + a + b[1:]
        def mf(s):
            A = AS[s & 1]; B = BS[s & 1]
            if T == 1: return [f'{MF} {vr(ACC+16*t,16)}, {vr(A+4*t,4)}, {vr(B,4)}, {vr(ACC+16*t,16)}' for t in range(4)]
            return [f'{MF} {vr(ACC+16*(2*q+t),16)}, {vr(A+4*t,4)}, {vr(B+4*q,4)}, {vr(ACC+16*(2*q+t),16)}' for q in range(2) for t in range(2)]
        st = len(p.seq)
        p.label(f'L_P2LOOP{T}')
        p.I(f'v_add_u32 v{V_AA}, s{S_SA}, v{V_AL}')
        p.I(f'v_add_u32 v{V_BA}, s{S_SB}, v{V_BL}')
        flag_check()
        grp(mf(3), reads(0), 3)
        grp(mf(0), reads(1) + adv(S_SA, R['astep'], R['aend'], R['awrap']), 3)
        grp(mf(1), reads(2) + adv(S_SB, R['bstep'], R['bend'], R['b0']), 3)
        m = mf(2)
        grp(m[:3], reads(3) + [flag_read(), f'v_add_u32 v{V_TH}, 1, v{V_TH}', f's_add_u32 s{S_I}, s{S_I}, 1', f's_cmp_lt_u32 s{S_I}, 16'], 4)
        p.I('s_waitcnt lgkmcnt(0)')
        p.I(m[3])
        p.I('s_barrier')
        p.I(f's_cbranch_scc1 L_P2LOOP{T}')
        b = p.seq[st:]
        check_hazards(b + b, f'p2loop{T}')
        for i in mf(3): p.I(i)
    variant(1)
    p.I('s_branch L_XCH')
    p.label('L_P2T2')
    variant(2)
    p.label('L_XCH')
    stamp(6)
    p.I(f's_cmp_eq_u32 s{S_W}, s{S_KQ}')
    p.I('s_cbranch_scc1 L_OWN')
    p.I(f's_lshl_b32 s4, s{S_GRP}, 2')
    p.I(f's_add_u32 s4, s4, s{S_W}')
    p.I('s_lshl_b32 s5, s4, 7')
    p.I('s_lshl_b32 s4, s4, 2')
    p.I(f's_add_u32 s4, s4, s{S_KQ}')
    p.I('s_lshl_b32 s4, s4, 14')
    p.I(f's_add_u32 s4, s4, {P_OFF}')
    BF = OPT['pbf']; NST = 2 if BF else 4
    for t in range(4):
        if t: p.I('s_add_u32 s4, s4, 4096')
        if BF:
            for r in range(8): p.I(f'v_cvt_pk_bf16_f32 v{ACC+16*t+r}, v{ACC+16*t+2*r}, v{ACC+16*t+2*r+1}')
        for g in range(NST):
            p.I(f'buffer_store_dwordx4 {vr(ACC+16*t+4*g,4)}, v{V_L16}, {sr(SRD_WS,4)}, s4 offen offset:{g*1024} sc1')
    p.I(f's_lshl_b32 s4, s{S_KQ}, 2')
    p.I('s_add_u32 s4, s4, s5')
    p.I(f's_add_u32 s4, s4, {FP_OFF}')
    p.I('v_mov_b32 v7, 0'); p.I('v_mov_b32 v29, 1')
    p.I('s_waitcnt vmcnt(0)')
    p.I(f'buffer_store_dword v29, v7, {sr(SRD_WS,4)}, s4 offen sc1')
    finish()
    p.label('L_OWN')
    for g in range(16): p.I(f'ds_write_b128 v{V_L16}, {vr(ACC+4*g,4)} offset:{g*1024}')
    p.I(f'v_mov_b32 v{V_DV}, 60')
    p.I(f'ds_write_b32 v{V_DA}, v{V_DV}')
    p.I('s_waitcnt lgkmcnt(0)')
    finish()
    p.label('L_P2IDLE')
    p.lds_q = []
    for _ in range(16): p.I('s_barrier')
    p.label('L_FINAL')
    stamp(6)
    p.I(f's_sub_u32 s14, s{S_W}, 4')
    p.I(f's_lshl_b32 s4, s{S_GRP}, 2')
    p.I(f's_add_u32 s4, s4, s{S_KQ}')
    p.I('s_lshl_b32 s5, s4, 7')
    p.I(f's_add_u32 s5, s5, {FP_OFF}')
    p.I('s_lshl_b32 s4, s4, 16')
    p.I('s_lshl_b32 s6, s14, 12')
    p.I('s_add_u32 s4, s4, s6')
    p.I(f's_add_u32 s4, s4, {P_OFF}')
    p.I('v_lshlrev_b32 v7, 2, v2')
    p.I(f'v_cmp_ne_u32 s[86:87], s{S_KQ}, v2')
    p.I(f's_lshl_b32 s6, s{S_KQ}, 8')
    p.I(f's_add_u32 s6, s6, {FLG+256}')
    p.I('v_mov_b32 v30, s6')
    p.label('L_FP1')
    p.I(f'buffer_load_dword v29, v7, {sr(SRD_WS,4)}, s5 offen sc1')
    p.I('s_waitcnt vmcnt(0)')
    p.I('v_cmp_ne_u32 vcc, 1, v29')
    p.I('s_and_b64 vcc, vcc, s[86:87]')
    p.I('s_cbranch_vccz L_GO')
    spin_tail('L_FP1', 2)
    p.label('L_GO')
    stamp(7)
    for k in range(1, 4):
        p.I(f's_add_u32 s6, s{S_KQ}, {k}')
        p.I('s_and_b32 s6, s6, 3')
        p.I('s_lshl_b32 s6, s6, 14')
        p.I('s_add_u32 s6, s6, s4')
        for g in range(NST):
            p.I(f'buffer_load_dwordx4 {vr((64 if BF else ACC)+16*k+4*g,4)}, v{V_L16}, {sr(SRD_WS,4)}, s6 offen offset:{g*1024} sc1')
    p.label('L_FW1')
    p.I('ds_read_b32 v29, v30')
    p.I('s_waitcnt lgkmcnt(0)')
    p.I('v_cmp_gt_u32 vcc, 60, v29')
    p.I('s_cbranch_vccz L_FW2')
    spin_tail('L_FW1', 0)
    p.label('L_FW2')
    p.I('s_lshl_b32 s6, s14, 12')
    p.I(f'v_add_u32 v30, s6, v{V_L16}')
    for g in range(4): p.I(f'ds_read_b128 {vr(ACC+4*g,4)}, v30 offset:{g*1024}')
    p.I('s_movk_i32 s5, 1152')
    p.I('v_mul_lo_u32 v7, v6, s5')
    p.I('v_lshl_add_u32 v7, v5, 5, v7')
    p.I(f's_lshl_b32 s4, s{S_KQ}, 1')
    p.I('s_lshr_b32 s5, s14, 1')
    p.I('s_add_u32 s4, s4, s5')
    p.I('s_and_b32 s6, s14, 1')
    p.I(f's_cmp_ge_u32 s{S_IDX}, 28')
    p.I(f's_cselect_b32 s4, s4, s{S_KQ}')
    p.I('s_cselect_b32 s6, s6, s14')
    p.I('s_cmp_ge_u32 s4, 7')
    p.I('s_cbranch_scc1 L_FIN')
    p.I(f's_add_u32 s4, s4, s{S_Q0}')
    p.I('s_and_b32 s5, s2, 1')
    p.I('s_mul_i32 s5, s5, 28')
    p.I('s_add_u32 s4, s4, s5')
    p.I(f's_mul_i32 s4, s4, {32*1152}')
    p.I('s_lshl_b32 s6, s6, 6')
    p.I('s_add_u32 s4, s4, s6')
    p.I(f's_add_u32 s4, s4, s{S_N0}')
    p.I('s_waitcnt vmcnt(0)')
    if BF:
        for k in range(1, 4):
            for r in range(8):
                p.I(f'v_lshlrev_b32 v{ACC+16*k+2*r}, 16, v{64+16*k+r}')
                p.I(f'v_and_b32 v{ACC+16*k+2*r+1}, 0xffff0000, v{64+16*k+r}')
    for r in range(16):
        p.I(f'v_add_f32 v{ACC+r}, v{ACC+r}, v{ACC+16+r}')
        p.I(f'v_add_f32 v{ACC+32+r}, v{ACC+32+r}, v{ACC+48+r}')
    for r in range(16): p.I(f'v_add_f32 v{ACC+r}, v{ACC+r}, v{ACC+32+r}')
    for r in range(8): p.I(f'v_cvt_pk_bf16_f32 v{40+r}, v{ACC+2*r}, v{ACC+2*r+1}')
    p.I(f'buffer_store_dwordx4 v[40:43], v7, {sr(SRD_OUT,4)}, s4 offen')
    p.I(f'buffer_store_dwordx4 v[44:47], v7, {sr(SRD_OUT,4)}, s4 offen offset:16')
    p.label('L_FIN')
    finish()
    p.auto = False
    for l, ret, S in rare:
        p.label(l)
        p.I('s_nop 15'); p.I('s_nop 15')
        p.I(f'v_mov_b32 v{V_T0}, v{V_MX}')
        p.I('s_nop 1')
        p.I(f'v_permlane32_swap_b32 v{V_MX}, v{V_T0}')
        p.I('s_nop 1')
        p.I(f'v_max3_f32 v{V_MX}, v{V_MX}, v{V_T0}, 0')
        p.I(f'v_exp_f32 v{V_T0}, -v{V_MX}')
        for r in range(16):
            p.I(f'v_sub_f32 v{S+r}, v{S+r}, v{V_MX}')
            p.I(f'v_sub_f32 v{NEGM+r}, v{NEGM+r}, v{V_MX}')
        p.I(f'v_mul_f32 v{V_L0}, v{V_L0}, v{V_T0}')
        p.I(f'v_mul_f32 v{V_L1}, v{V_L1}, v{V_T0}')
        for r in range(64): p.I(f'v_mul_f32 v{OA+r}, v{OA+r}, v{V_T0}')
        p.I('s_nop 3')
        p.I(f's_branch {ret}')
    for l, ret in spins:
        p.label(l)
        p.I(flag_read())
        p.I('s_waitcnt lgkmcnt(0)')
        p.I(f'v_cmp_gt_i32 vcc, v{V_TH}, v{V_FV}')
        p.I(f's_cbranch_vccz {ret}')
        spin_tail(l)
    p.auto = True

    p.label('L_LOADER')
    p.lds_q = []
    VP, VX, VW, V_QA, V_QV, V_Z = 8, 12, 16, 20, 21, 23
    p.I('v_and_b32 v29, 1, v4')
    p.I('v_lshl_add_u32 v7, v29, 2, v3')
    p.I('s_movk_i32 s5, 1152')
    p.I('v_mul_lo_u32 v7, v7, s5')
    p.I('v_lshl_add_u32 v7, v5, 6, v7')
    p.I('v_xor_b32 v30, v2, v29')
    p.I(f'v_lshl_add_u32 v{VX}, v30, 4, v7')
    p.I(f'v_xor_b32 v{VX+1}, 32, v{VX}')
    p.I(f'v_add_u32 v{VX+2}, 16384, v{VX}')
    p.I(f'v_add_u32 v{VX+3}, 24576, v{VX+1}')
    p.I(f'v_add_u32 v{VX+1}, 8192, v{VX+1}')
    p.I('v_lshl_add_u32 v7, v4, 2, v2')
    p.I('v_lshlrev_b32 v7, 4, v7')
    p.I(f'v_lshl_add_u32 v{VW}, v3, 13, v7')
    for q in range(1, 4): p.I(f'v_add_u32 v{VW+q}, {q*(32768-1024)}, v{VW}')
    S_XB, S_WB, S_XO, S_WO = 85, 86, 87, 88
    p.I(f's_mul_i32 s{S_XB}, s{S_B}, 258048')
    p.I(f's_lshl_b32 s{S_WB}, s{S_H}, 8')
    p.I(f'v_mov_b32 v{V_Z}, 0')
    def publish(val):
        p.I(f's_mov_b32 m0, {FLG}')
        if isinstance(val, int): p.I(f's_add_u32 s13, s15, {4*val}')
        else:
            p.I(f's_lshl_b32 s13, {val}, 2')
            p.I('s_add_u32 s13, s13, s15')
        p.I(f'buffer_load_dword v{V_Z}, {sr(SRD_WS,4)}, s13 offen lds')
    def wait_done(val):
        a, bb = lab('L_LW'), lab('L_LX')
        p.label(a)
        p.I(f'ds_read_b32 v{V_QV}, v{V_QA}')
        p.I('s_waitcnt lgkmcnt(0)')
        p.I(f'v_cmp_gt_u32 vcc, {val}, v{V_QV}')
        p.I(f's_cbranch_vccz {bb}')
        spin_tail(a)
        p.label(bb)
    def stage(slot, lw):
        p.I(f's_lshl_b32 s{S_XO}, s{S_KS}, 7')
        p.I(f's_add_u32 s{S_XO}, s{S_XO}, s{S_XB}')
        p.I(f's_lshl_b32 s{S_WO}, s{S_KS}, 19')
        p.I(f's_add_u32 s{S_WO}, s{S_WO}, s{S_WB}')
        for kind, g in [('w', 0), ('w', 1)] + [('x', w) for w in range(7)] + [('w', 2), ('w', 3)]:
            if lw < 63: p.I(f's_waitcnt vmcnt({lw})')
            if kind == 'x':
                p.I(f's_mov_b32 m0, {XS[slot] + g*4096}')
                p.I(f's_add_u32 s13, s{S_XO}, {g*36864}')
                for q in range(4): p.I(f'buffer_load_dwordx4 v{VX+q}, {sr(SRD_X,4)}, s13 offen offset:{q*1024} lds')
            else:
                p.I(f's_mov_b32 m0, {WSL[slot] + g*4096}')
                p.I(f's_add_u32 s13, s{S_WO}, {g*131072}')
                for q in range(4): p.I(f'buffer_load_dwordx4 v{VW+q}, {sr(SRD_WQ,4)}, s13 offen offset:{q*1024} lds')
        p.I(f's_add_u32 s{S_KS}, s{S_KS}, 1')
        p.I(f's_cmp_eq_u32 s{S_KS}, 9')
        p.I(f's_cselect_b32 s{S_KS}, 0, s{S_KS}')
    p.I('v_min_u32 v7, 6, v0')
    p.I('v_lshlrev_b32 v7, 8, v7')
    p.I(f'v_add_u32 v{V_QA}, {FLG+256}, v7')
    for slot in range(3):
        stage(slot, 63)
        if slot == 0: p.I('s_barrier')
        publish(slot + 1)
    p.I(f's_mov_b32 s{S_I}, 3')
    p.label('L_LQ')
    for slot in range(3):
        p.I(f's_sub_u32 s5, s{S_I}, 2')
        wait_done('s5')
        stage(slot, OPT['lw'])
        p.I(f's_add_u32 s{S_I}, s{S_I}, 1')
        publish(f's{S_I}')
    p.I(f's_cmp_lt_u32 s{S_I}, 9')
    p.I('s_cbranch_scc1 L_LQ')
    stamp(2)
    for j in range(4):
        p.I(f'v_xor_b32 v7, {j}, v2')
        p.I('v_lshl_add_u32 v7, v4, 2, v7')
        p.I('v_lshlrev_b32 v7, 4, v7')
        p.I(f'v_lshl_add_u32 v{VP+j}, v3, 8, v7')
    p.I(f's_lshl_b32 s4, s{S_B}, 5')
    p.I(f's_add_u32 s4, s4, s{S_H}')
    p.I('s_lshl_b32 s12, s4, 17')
    def ld(kind, n):
        lds = (n % 10) * 8192 if kind == 'K' else VTOP - 8192 * (1 + n % NVS)
        for half in range(2):
            p.I(f's_mov_b32 m0, {lds + half*4096}')
            p.I(f's_add_u32 s13, s12, {n*8192 + half*4096}')
            for q in range(4):
                p.I(f'buffer_load_dwordx4 v{VP + q if kind == "K" else VP}, {sr(SRD_K if kind == "K" else SRD_V,4)}, s13 offen offset:{q*1024} nt lds')
    def qneed(lo, hi):
        need = 0
        for k in range(3):
            for base, size in ((XS[k], 28672), (WSL[k], 16384)):
                if lo < base + size and base < hi: need = max(need, 7 + k)
        if lo < HO + 24576 and HO < hi: need = max(need, 10)
        return need
    def touch(qbs):
        p.I(f's_mul_i32 s6, s{S_G}, 28')
        p.I(f's_and_b32 s7, s{S_IDX}, 3')
        p.I('s_mul_i32 s7, s7, 7')
        p.I('s_add_u32 s6, s6, s7')
        p.I('s_lshl_b32 s6, s6, 16')
        p.I(f's_and_b32 s7, s{S_IDX}, 0xfc')
        p.I('s_lshl_b32 s7, s7, 11')
        p.I('s_add_u32 s6, s6, s7')
        for qb in qbs:
            for half in range(2):
                if OPT['xw'] < 63: p.I(f's_waitcnt vmcnt({OPT["xw"]})')
                p.I(f's_add_u32 s13, s6, {qb*65536 + half*4096}')
                for q in range(4): p.I(f'buffer_load_dwordx4 {vr(40+4*q,4)}, v{V_L16}, {sr(SRD_WS,4)}, s13 offen offset:{q*1024} sc1')
    got = 6
    tq = 0
    for kind, n in [('K', 0), ('K', 1)] + [o for u in range(16) for o in ([('V', u)] + ([('K', u+2)] if u + 2 < 16 else []))]:
        if kind == 'K':
            lds = (n % 10) * 8192
            need = qneed(lds, lds + 8192)
            if n >= 10: need = max(need, 10 if n - 10 < 2 else 11 + n - 12)
            full = 10 if n == 1 else (11 + n - 2 if n >= 2 else None)
        else:
            lds = VTOP - 8192 * (1 + n % NVS)
            need = qneed(lds, lds + 8192)
            if n >= NVS: need = max(need, 11 + n - NVS)
            full = 11 + n if n + 2 >= 16 else None
        if need > got:
            wait_done(need); got = need
        ld(kind, n)
        if full is not None:
            publish(full)
            if OPT['touch'] >= 0 and full - 11 >= OPT['touch'] and tq < 7: touch([tq]); tq += 1
    if OPT['touch'] >= 0 and tq < 7: touch(range(tq, 7))
    stamp(3)
    S_WO2, S_OO, S_LA, S_LB = 85, 86, 87, 88
    p.I(f's_mul_i32 s{S_WO2}, s{S_KQ}, {1024*1152}')
    p.I(f's_add_u32 s{S_WO2}, s{S_WO2}, s{S_N0}')
    p.I(f's_mul_i32 s14, s{S_G}, 28')
    p.I(f's_add_u32 s14, s14, s{S_Q0}')
    p.I(f's_lshl_b32 s{S_OO}, s14, 16')
    p.I('s_lshl_b32 s14, s14, 7')
    p.I(f's_add_u32 s14, s14, {FO_OFF}')
    p.I('s_movk_i32 s5, 1152')
    p.I(f's_cmp_ge_u32 s{S_IDX}, 28')
    p.I('s_cbranch_scc1 L_L2')
    def lvariant(T):
        R = RG[T]
        if T == 1:
            p.I('v_mul_lo_u32 v7, v3, s5')
            p.I('v_lshl_add_u32 v29, v4, 2, v2')
            p.I(f'v_lshl_add_u32 v{VW}, v29, 4, v7')
            for q in range(1, 4): p.I(f'v_add_u32 v{VW+q}, {q*(4*1152-1024)}, v{VW}')
            ngw, rows, nq = 4, 16, 4
            pre_need = [16, 18, 20, 22, 24]
        else:
            p.I('v_lshl_add_u32 v7, v5, 2, v3')
            p.I('v_mul_lo_u32 v7, v7, s5')
            p.I('v_and_b32 v29, 1, v4')
            p.I('v_lshl_add_u32 v29, v29, 2, v2')
            p.I(f'v_lshl_add_u32 v{VW}, v29, 4, v7')
            for q in range(1, 4): p.I(f'v_add_u32 v{VW+q}, {q*(8*1152-1024)}, v{VW}')
            ngw, rows, nq = 2, 32, 7
            pre_need = [19 + i for i in range(8)]
        p.I(f's_mov_b32 s{S_LA}, {R["a0"]}')
        p.I(f's_mov_b32 s{S_LB}, {R["b0"]}')
        def wo_stage():
            for g in range(0 if OPT['skip'] & 1 else ngw):
                p.I(f's_add_u32 m0, s{S_LA}, {g*4096}')
                p.I(f's_add_u32 s13, s{S_WO2}, {g*rows*1152}')
                for q in range(4): p.I(f'buffer_load_dwordx4 v{VW+q}, {sr(SRD_WO,4)}, s13 offen offset:{q*1024} lds')
            p.I(f's_add_u32 s{S_WO2}, s{S_WO2}, {64*1152}')
            for i in adv(S_LA, R['astep'], R['aend'], R['awrap']): p.I(i)
        def o_stage():
            for g in range(0 if OPT['skip'] & 2 else nq):
                p.I(f's_add_u32 m0, s{S_LB}, {g*4096}')
                p.I(f's_add_u32 s13, s{S_OO}, {g << 16}')
                for q in range(4): p.I(f'buffer_load_dwordx4 v{V_L16}, {sr(SRD_WS,4)}, s13 offen offset:{q*1024} {"sc1 " if OPT["osc"] else ""}lds')
            p.I(f's_add_u32 s{S_OO}, s{S_OO}, 4096')
            for i in adv(S_LB, R['bstep'], R['bend'], R['b0']): p.I(i)
            publish(f's{S_I}')
            p.I(f's_add_u32 s{S_I}, s{S_I}, 1')
        step = pre_need[1] - pre_need[0]
        p.I(f's_mov_b32 s6, {pre_need[0]}')
        l = lab('L_PRE')
        p.label(l)
        wait_done('s6')
        if OPT['xw'] < 63: p.I(f's_waitcnt vmcnt({max(OPT["xw"]-12, 0)})')
        wo_stage()
        p.I(f's_add_u32 s6, s6, {step}')
        p.I(f's_cmp_le_u32 s6, {pre_need[-1]}')
        p.I(f's_cbranch_scc1 {l}')
        if OPT['wowarm']:
            p.I(f's_mul_i32 s4, s{S_KQ}, {1024*1152}')
            p.I(f's_mul_i32 s5, s{S_IDX}, 25344')
            p.I('s_add_u32 s4, s4, s5')
            for j in range(7):
                if OPT['xw'] < 63: p.I(f's_waitcnt vmcnt({OPT["xw"]})')
                p.I(f's_add_u32 s5, s4, {320*1152 + j*4096}')
                for q in range(4 if j < 6 else 1): p.I(f'buffer_load_dwordx4 {vr(40+4*q,4)}, v{V_L16}, {sr(SRD_WO,4)}, s5 offen offset:{q*1024}')
        wait_done(26)
        stamp(4)
        p.I('v_lshrrev_b32 v7, 3, v0')
        p.I(f'v_min_u32 v7, {nq-1}, v7')
        p.I('v_lshlrev_b32 v7, 7, v7')
        p.I('v_and_b32 v29, 7, v0')
        p.I('v_lshl_add_u32 v7, v29, 2, v7')
        l, g2 = lab('L_OF'), lab('L_OG')
        p.label(l)
        p.I(f'buffer_load_dword v29, v7, {sr(SRD_WS,4)}, s14 offen sc1')
        p.I('s_waitcnt vmcnt(0)')
        p.I('v_cmp_ne_u32 vcc, 1, v29')
        p.I(f's_cbranch_vccz {g2}')
        spin_tail(l, 1)
        p.label(g2)
        stamp(5)
        p.I(f's_mov_b32 s{S_I}, 27')
        l = lab('L_O0')
        p.label(l)
        o_stage()
        p.I(f's_cmp_lt_u32 s{S_I}, {27 + R["nb"]}')
        p.I(f's_cbranch_scc1 {l}')
        p.I('s_mov_b32 s6, 0')
        l, a1, a2 = lab('L_OM'), lab('L_OA'), lab('L_OB')
        p.label(l)
        p.I('s_barrier')
        p.I(f's_cmp_ge_u32 s6, {16 - R["nb"]}')
        p.I(f's_cbranch_scc1 {a1}')
        o_stage()
        p.label(a1)
        p.I(f's_cmp_ge_u32 s6, {16 - R["na"]}')
        p.I(f's_cbranch_scc1 {a2}')
        wo_stage()
        p.label(a2)
        p.I('s_add_u32 s6, s6, 1')
        p.I('s_cmp_lt_u32 s6, 16')
        p.I(f's_cbranch_scc1 {l}')
        p.I('s_branch L_FINAL')
    lvariant(1)
    p.label('L_L2')
    lvariant(2)
    p.label('L_END')
    p.I('s_endpgm')
    check_hazards(p.seq, 'all')
    return p.text(), KN

def main(out):
    t, kn = gen()
    hdr = open('cdna_kernels/' + NAME + '.s.ref').read().split('; Override')[0]
    s = hdr + '; @launch grid=(256,1,1) block=(512,1,1) lds=163840\n'
    s += '.amdgcn_target "amdgcn-amd-amdhsa--gfx950"\n.text\n' + t
    s += f'''.section .rodata,"a"
.p2align 6
.amdhsa_kernel {kn}
  .amdhsa_next_free_vgpr 256
  .amdhsa_next_free_sgpr 100
  .amdhsa_accum_offset 256
  .amdhsa_group_segment_fixed_size 0
  .amdhsa_kernarg_size 64
  .amdhsa_user_sgpr_count 2
  .amdhsa_user_sgpr_kernarg_segment_ptr 1
  .amdhsa_system_sgpr_workgroup_id_x 1
.end_amdhsa_kernel
'''
    open(out, 'w').write(s)

if __name__ == '__main__':
    for a in sys.argv[2:]:
        k, v = a.split('=')
        OPT[k] = int(v) if v.lstrip('-').isdigit() else v
    main(sys.argv[1])
```

```python
import sys, struct
from asmlib import *

def f32(x): return '0x%08x' % struct.unpack('<I', struct.pack('<f', x))[0]
NAME = 'standalone__mha_block_cached__near_ridge'
SCALE = (128 ** -0.5) * 1.4426950408889634
THR = 8.0
X_BYTES = 8*224*576*2
KV_BYTES = 8*32*512*128*2
W_BYTES = 576*4096*2
T_OFF = 32 << 20
FO_OFF = 33 << 20
FP_OFF = FO_OFF + 65536
REC_OFF = FO_OFF + 131072
P_OFF = 40 << 20
WS_BYTES = 64 << 20

OPT = dict(xw=63, touch=99, skip=0, ofl='', osc=0, stamp=0, lw=12, skq=1, ska=2, pp='', pbf=0, slow=0, nochk=0, wowarm=1, wopre=1)

def vr(a, n=1): return f'v{a}' if n == 1 else f'v[{a}:{a+n-1}]'
def sr(a, n=1): return f's{a}' if n == 1 else f's[{a}:{a+n-1}]'
MF = 'v_mfma_f32_32x32x16_bf16'

XS = [126976, 32768, 61440]
WSL = [16384, 110592, 94208]
FLG = 90112
VTOP = 163840
NVS = 8
HO = 57344

S_W, S_B, S_H, S_I, S_KS = 3, 8, 9, 10, 11
SRD_X, SRD_WQ, SRD_K, SRD_V, SRD_WS, SRD_WO, SRD_OUT, SRD_DBG = 32, 36, 40, 44, 48, 52, 56, 60
S_SPIN = 84
S_G, S_KQ, S_IDX, S_GRP, S_Q0, S_N0 = 92, 93, 94, 95, 96, 97
SPIN_MAX = 0x200000

def gen():
    p = Prog(); p.nlab = 0
    KN = NAME + '_kernel'
    def lab(pre):
        p.nlab += 1; return f'{pre}{p.nlab}'
    def srd(dst, lo, nbytes):
        p.I(f's_mov_b32 s{dst}, s{lo}'); p.I(f's_mov_b32 s{dst+1}, s{lo+1}')
        p.I(f's_mov_b32 s{dst+2}, {nbytes}'); p.I(f's_mov_b32 s{dst+3}, 0x00020000')
    def stamp(k, real=False):
        if not OPT['stamp']: return
        p.I('s_waitcnt lgkmcnt(0)')
        p.I(f's_memrealtime s[{64+2*k}:{65+2*k}]' if real else f's_memtime s[{64+2*k}:{65+2*k}]')
        p.I('s_waitcnt lgkmcnt(0)')
    def finish():
        if OPT['stamp']:
            p.I('s_waitcnt vmcnt(0)')
            stamp(8); stamp(9, True)
            p.I('s_lshl_b32 s4, s2, 3')
            p.I(f's_add_u32 s4, s4, s{S_W}')
            p.I('s_lshl_b32 s4, s4, 6')
            p.I(f's_add_u32 s4, s4, {64<<20}')
            p.I('v_mov_b32 v1, 0')
            for k in range(10):
                p.I(f'v_mov_b32 v2, s{64+2*k}')
                p.I(f'buffer_store_dword v2, v1, {sr(SRD_WS,4)}, s4 offen offset:{4*k}')
        p.I('s_endpgm')
    def spin_tail(back, sleep=1):
        if sleep: p.I(f's_sleep {sleep}')
        p.I(f's_add_u32 s{S_SPIN}, s{S_SPIN}, 1')
        p.I(f's_cmp_lt_u32 s{S_SPIN}, {SPIN_MAX}')
        p.I(f's_cbranch_scc1 {back}')
        p.I('s_endpgm')
    def interleave(mfmas, fillers):
        n = len(mfmas); fi = 0; rem = len(fillers)
        for k, m in enumerate(mfmas):
            p.I(m)
            for _ in range((rem * (k + 1)) // n - (rem * k) // n):
                p.I(fillers[fi]); fi += 1
    def grp(m, f, per):
        fi = 0
        for k, mm in enumerate(m):
            p.I(mm)
            for _ in range(per if k < len(m) - 1 else len(f)):
                if fi < len(f): p.I(f[fi]); fi += 1

    p.raw(f'.globl {KN}\n.p2align 8\n.type {KN},@function\n{KN}:')
    p.I('s_cmp_ge_u32 s2, 256')
    p.I('s_cbranch_scc1 L_END')
    p.I('s_load_dwordx16 s[16:31], s[0:1], 0')
    p.I('v_lshrrev_b32 v1, 6, v0')
    p.I('v_and_b32 v0, 63, v0')
    p.I(f'v_readfirstlane_b32 s{S_W}, v1')
    p.I(f's_mov_b32 s{S_SPIN}, 0')
    p.I(f's_and_b32 s{S_G}, s2, 7')
    p.I(f's_lshr_b32 s{S_IDX}, s2, 3')
    p.I('s_and_b32 s6, s2, 1')
    p.I(f's_and_b32 s7, s{S_IDX}, 3')
    p.I('s_lshl_b32 s4, s6, 2')
    p.I(f's_add_u32 s{S_B}, s4, s7')
    p.I(f's_lshr_b32 s{S_KQ}, s{S_G}, 1')
    p.I(f's_lshr_b32 s5, s{S_IDX}, 2')
    p.I(f's_lshl_b32 s4, s{S_KQ}, 3')
    p.I(f's_add_u32 s{S_H}, s4, s5')
    p.I('s_add_u32 s4, s5, s7')
    p.I('s_mul_i32 s13, s4, 86')
    p.I('s_lshr_b32 s13, s13, 8')
    p.I('s_mul_i32 s13, s13, 3')
    p.I('s_sub_u32 s4, s4, s13')
    p.I(f's_mul_i32 s{S_KS}, s4, 3')
    p.I(f's_lshl_b32 s{S_GRP}, s6, 5')
    p.I(f's_add_u32 s{S_GRP}, s{S_GRP}, s{S_IDX}')
    p.I(f's_and_b32 s4, s{S_IDX}, 0xfc')
    p.I(f's_sub_u32 s5, s{S_IDX}, 28')
    p.I('s_mul_i32 s5, s5, 7')
    p.I('s_lshl_b32 s7, s7, 8')
    p.I(f's_cmp_ge_u32 s{S_IDX}, 28')
    p.I(f's_cselect_b32 s{S_Q0}, s5, s4')
    p.I(f's_cselect_b32 s{S_N0}, 1024, s7')
    p.I('v_and_b32 v2, 3, v0')
    p.I('v_bfe_u32 v3, v0, 2, 2')
    p.I('v_lshrrev_b32 v4, 4, v0')
    p.I('v_lshrrev_b32 v5, 5, v0')
    p.I('v_and_b32 v6, 31, v0')
    V_FA, V_DA, V_FV, V_DV, V_L16, V_L4, V_TOK = 32, 33, 34, 35, 36, 37, 38
    p.I(f'v_lshlrev_b32 v{V_L16}, 4, v0')
    p.I(f'v_lshlrev_b32 v{V_L4}, 2, v0')
    p.I(f'v_add_u32 v{V_FA}, {FLG}, v{V_L4}')
    p.I(f's_add_u32 s4, s{S_W}, 1')
    p.I('s_and_b32 s4, s4, 7')
    p.I('s_lshl_b32 s4, s4, 8')
    p.I(f'v_add_u32 v{V_DA}, s4, v{V_FA}')
    p.I(f's_sub_u32 s4, s{S_W}, 4')
    p.I('s_cmp_lt_u32 s4, 3')
    p.I('s_cselect_b32 s4, 9, 0')
    p.I(f'v_mov_b32 v{V_DV}, s4')
    p.I(f'ds_write_b32 v{V_DA}, v{V_DV}')
    p.I('v_mov_b32 v7, 0')
    p.I(f'ds_write_b32 v{V_FA}, v7 offset:2048')
    p.I('s_waitcnt lgkmcnt(0)')
    srd(SRD_X, 16, X_BYTES); srd(SRD_K, 18, KV_BYTES); srd(SRD_V, 20, KV_BYTES); srd(SRD_WQ, 22, W_BYTES)
    srd(SRD_WO, 24, W_BYTES); srd(SRD_OUT, 26, X_BYTES); srd(SRD_DBG, 28, 256)
    srd(SRD_WS, 30, (128 << 20) if OPT['stamp'] else WS_BYTES)
    p.I('s_lshl_b32 s15, s2, 8')
    p.I(f's_add_u32 s15, s15, {T_OFF}')
    if OPT['stamp']:
        for k in range(2, 8): p.I(f's_mov_b32 s{64+2*k}, 0')
    stamp(0, True); stamp(1)
    p.I(f's_cmp_eq_u32 s{S_W}, 7')
    p.I('s_cbranch_scc1 L_LOADER')

    V_XA0, V_XA1, V_WL, V_WA, V_XL0, V_XL1 = 10, 11, 12, 13, 14, 15
    V_KL0, V_KL1, V_VL, V_KA0, V_KA1, V_VA = 16, 17, 18, 19, 20, 21
    V_L0, V_L1, V_MX, V_T0, V_TH, V_SK = 22, 23, 24, 25, 27, 28
    KF, VF, PP, QF, NEGM, S0, S1, OA = 40, 72, 104, 112, 144, 160, 176, 192
    S_NEED = 85
    spins = []
    def flag_read(): return f'ds_read_b32 v{V_FV}, v{V_FA}'
    def flag_check():
        l, r = lab('L_SPIN'), lab('L_SRET')
        spins.append((l, r))
        p.I(f'v_cmp_gt_i32 vcc, v{V_TH}, v{V_FV}')
        p.I(f's_cbranch_vccnz {l}')
        p.label(r)
    def release():
        return [f'v_mov_b32 v{V_DV}, s{S_NEED}', f'ds_write_b32 v{V_DA}, v{V_DV}', f's_add_u32 s{S_NEED}, s{S_NEED}, 1', f'v_add_u32 v{V_TH}, 1, v{V_TH}']
    p.I('v_add_u32 v7, 1, v0')
    p.I('v_lshlrev_b32 v7, 8, v7')
    p.I(f'v_add_u32 v7, {FLG}, v7')
    p.I('v_cmp_gt_u32 vcc, 7, v0')
    p.I(f'v_cndmask_b32 v{V_FA}, v{V_FA}, v7, vcc')
    p.I(f'v_cndmask_b32 v{V_SK}, 0, 1, vcc')
    p.I(f'v_mul_u32_u24 v7, {OPT["skq"]+1}, v{V_SK}')
    p.I(f'v_sub_u32 v{V_TH}, 1, v7')
    p.I('v_and_b32 v29, 1, v4')
    p.I('v_lshlrev_b32 v7, 10, v5')
    p.I('v_lshl_add_u32 v7, v3, 6, v7')
    p.I('v_lshl_add_u32 v7, v29, 5, v7')
    p.I(f'v_lshl_add_u32 v{V_VL}, v2, 3, v7')
    p.I('v_lshrrev_b32 v7, 2, v6')
    p.I('v_lshlrev_b32 v7, 10, v7')
    p.I('v_lshl_add_u32 v7, v2, 6, v7')
    p.I(f'v_xor_b32 v{V_KL0}, v5, v3')
    p.I(f'v_lshl_add_u32 v{V_KL0}, v{V_KL0}, 4, v7')
    p.I(f'v_xor_b32 v{V_KL1}, 32, v{V_KL0}')
    p.I(f'v_mov_b32 v{V_FV}, 0')
    EA = 144
    WS = [40, 56]; XSET = [72, 88]
    def kreads(dst, a0, a1, off):
        return [f'ds_read_b128 {vr(dst+4*s2,4)}, v{a1 if s2&1 else a0} offset:{off+(s2>>1)*256}' for s2 in range(8)]
    K0F = VF
    qk0 = [f'{MF} {vr(S0,16)}, {vr(K0F+4*s2,4)}, {vr(QF+4*s2,4)}, {"0" if s2 == 0 else vr(S0,16)}' for s2 in range(8)]
    p.I(f's_cmp_ge_u32 s{S_W}, 4')
    p.I('s_cbranch_scc1 L_QWAIT')
    p.I('v_lshrrev_b32 v7, 3, v6')
    p.I('v_lshlrev_b32 v7, 10, v7')
    p.I('v_and_b32 v30, 1, v3')
    p.I('v_lshl_add_u32 v7, v30, 8, v7')
    p.I('v_lshl_add_u32 v7, v2, 6, v7')
    p.I(f'v_xor_b32 v{V_XL0}, v5, v3')
    p.I(f'v_lshl_add_u32 v{V_XL0}, v{V_XL0}, 4, v7')
    p.I(f's_lshl_b32 s4, s{S_W}, 12')
    p.I(f'v_add_u32 v{V_XL0}, s4, v{V_XL0}')
    p.I(f'v_xor_b32 v{V_XL1}, 32, v{V_XL0}')
    p.I('v_lshlrev_b32 v7, 11, v5')
    p.I('v_lshl_add_u32 v7, v3, 6, v7')
    p.I('v_lshl_add_u32 v7, v29, 5, v7')
    p.I('v_and_b32 v30, 1, v2')
    p.I(f'v_lshl_add_u32 v{V_WL}, v30, 4, v7')
    p.I('v_lshrrev_b32 v30, 1, v2')
    p.I(f'v_lshl_add_u32 v{V_WL}, v30, 3, v{V_WL}')
    p.I(f's_mov_b32 s{S_I}, 0')
    p.I(f's_mov_b32 s{S_NEED}, 1')
    for k in range(3):
        p.I(f's_mov_b32 s{86+k}, {XS[k]}')
        p.I(f's_mov_b32 s{89+k}, {WSL[k]}')
    for r in range(64): p.I(f'v_mov_b32 v{OA+r}, 0')
    for r in range(48): p.I(f'v_mov_b32 v{EA+r}, 0')
    for r in range(16): p.I(f'v_mov_b32 v{WS[1]+r}, 0')
    for r in range(16): p.I(f'v_mov_b32 v{XSET[1]+r}, 0')
    p.I(f's_lshl_b32 s4, s{S_W}, 13')
    p.I(f's_cmp_eq_u32 s{S_W}, 3')
    p.I('s_cselect_b32 s4, 6144, s4')
    p.I('s_cselect_b32 s5, 4, 1')
    p.I('s_lshl_b32 s5, s5, 11')
    p.I(f's_add_u32 s4, s4, {HO}')
    p.I(f'v_add_u32 v29, s4, v{V_L16}')
    p.I('v_add_u32 v30, s5, v29')
    p.I('v_add_u32 v31, s5, v30')
    p.I('s_barrier')
    p.I(f's_cmp_eq_u32 s{S_W}, 3')
    p.I('s_cbranch_scc1 L_QLOOPB')
    def qvariant(V):
        nx = 2 if V == 'A' else 4
        def reads(s):
            X = XSET[s & 1]; W = WS[s & 1]
            x = [f'ds_read_b128 {vr(X+4*j,4)}, v{V_XA1 if s&1 else V_XA0} offset:{(s>>1)*512 + (16384*j if V == "A" else 4096*j)}' for j in range(nx)]
            w = [f'ds_read_b64_tr_b16 {vr(W+4*t+2*u,2)}, v{V_WA} offset:{s*4096+u*1024+t*256}' for t in range(4) for u in range(2)]
            return [x[0]] + w[:2] + x[1:2] + w[2:] + x[2:]
        def qm(s, ext_first=False):
            W = WS[s & 1]; X = XSET[s & 1]
            own = [f'{MF} {vr(OA+16*t,16)}, {vr(W+4*t,4)}, {vr(X,4)}, {vr(OA+16*t,16)}' for t in range(4)]
            if V == 'A': ext = [f'{MF} {vr(EA+16*e,16)}, {vr(W+4*e,4)}, {vr(X+4,4)}, {vr(EA+16*e,16)}' for e in range(3)]
            else: ext = [f'{MF} {vr(EA+16*e,16)}, {vr(W+12,4)}, {vr(X+4+4*e,4)}, {vr(EA+16*e,16)}' for e in range(3)]
            if ext_first: return ext + own
            if V == 'A': return [own[0], ext[0], own[1], ext[1], own[2], ext[2], own[3]]
            return own + ext
        st = len(p.seq)
        p.label(f'L_QLOOP{V}')
        p.I(f'v_add_u32 v{V_WA}, s89, v{V_WL}')
        p.I(f'v_add_u32 v{V_XA0}, s86, v{V_XL0}')
        p.I(f'v_add_u32 v{V_XA1}, s86, v{V_XL1}')
        flag_check()
        grp(qm(3), reads(0), 2)
        grp(qm(0), reads(1), 2)
        grp(qm(1), reads(2) + ['s_mov_b32 s4, s86', 's_mov_b32 s86, s87', 's_mov_b32 s87, s88', 's_mov_b32 s88, s4'], 2)
        m = qm(2)
        grp(m[:-1], reads(3) + release() + [flag_read(), 's_mov_b32 s4, s89', 's_mov_b32 s89, s90', 's_mov_b32 s90, s91', 's_mov_b32 s91, s4',
                                                        f's_add_u32 s{S_I}, s{S_I}, 1', f's_cmp_lt_u32 s{S_I}, 9'], 3)
        p.I(m[-1])
        p.I('s_waitcnt lgkmcnt(0)')
        p.I(f's_cbranch_scc1 L_QLOOP{V}')
        b = p.seq[st:]
        check_hazards(b + b, 'qloop' + V)
        for i in qm(3, True): p.I(i)
    qvariant('A')
    p.I('s_branch L_QDONE')
    qvariant('B')
    p.label('L_QDONE')
    stamp(2)
    p.I(f'v_sub_u32 v{V_TH}, 10, v{V_SK}')
    flag_check()
    p.I(f'v_mul_u32_u24 v7, {OPT["ska"]+1}, v{V_SK}')
    p.I(f'v_sub_u32 v{V_TH}, 10, v7')
    for i in kreads(K0F, V_KL0, V_KL1, 0): p.I(i)
    p.I(f's_mov_b32 s4, {f32(SCALE)}')
    for e in range(3):
        for r in range(16): p.I(f'v_mul_f32 v{EA+16*e+r}, s4, v{EA+16*e+r}')
        for r in range(8): p.I(f'v_cvt_pk_bf16_f32 v{EA+16*e+r}, v{EA+16*e+2*r}, v{EA+16*e+2*r+1}')
        p.I(f'ds_write_b128 v{29+e}, {vr(EA+16*e,4)}')
        p.I(f'ds_write_b128 v{29+e}, {vr(EA+16*e+4,4)} offset:1024')
    for i in kreads(KF, V_KL0, V_KL1, 8192) + release() + [flag_read()]: p.I(i)
    for t in range(4):
        for h in range(2):
            for r in range(8): p.I(f'v_mul_f32 v{OA+16*t+8*h+r}, s4, v{OA+16*t+8*h+r}')
            for r in range(4): p.I(f'v_cvt_pk_bf16_f32 v{QF+8*t+4*h+r}, v{OA+16*t+8*h+2*r}, v{OA+16*t+8*h+2*r+1}')
            if 2*t+h >= 1: p.I(qk0[2*t+h-1])
    p.I(qk0[7])
    p.I('s_branch L_ATT')
    p.label('L_QWAIT')
    p.lds_q = []
    p.I(f's_cmp_lg_u32 s{S_W}, 4')
    p.I('s_cbranch_scc1 L_HK1')
    p.I(f'buffer_store_dword v0, v{V_L4}, {sr(SRD_WS,4)}, s15 offen')
    p.I('s_waitcnt vmcnt(0)')
    p.label('L_HK1')
    p.I('s_barrier')
    p.I(f's_cmp_lg_u32 s{S_W}, 5')
    p.I('s_cbranch_scc1 L_HK2')
    p.I('s_cmp_lg_u32 s2, 0')
    p.I('s_cbranch_scc1 L_HK2')
    p.I('s_memrealtime s[4:5]')
    p.I('s_waitcnt lgkmcnt(0)')
    p.I('s_mul_i32 s5, s5, 0x9e3779b1')
    p.I('s_xor_b32 s4, s4, s5')
    p.I('s_lshl_b32 s4, s4, 4')
    p.I('s_or_b32 s4, s4, 0x80000000')
    p.I('v_mov_b32 v30, s4')
    p.I('v_mov_b32 v29, 0')
    p.I(f'buffer_store_dword v30, v29, {sr(SRD_DBG,4)}, 0 offen sc1')
    p.label('L_HK2')
    p.I(f's_mov_b32 s{S_NEED}, 10')
    p.I('v_cmp_gt_u32 vcc, 4, v0')
    p.I(f'v_cndmask_b32 v7, v{V_SK}, 0, vcc')
    p.I(f'v_sub_u32 v{V_TH}, 10, v7')
    p.I(f's_sub_u32 s4, s{S_W}, 4')
    p.I('s_lshl_b32 s4, s4, 13')
    p.I(f's_add_u32 s4, s4, {HO}')
    p.I(f'v_add_u32 v29, s4, v{V_L16}')
    flag_check()
    stamp(2)
    kr = kreads(K0F, V_KL0, V_KL1, 0)
    for s2 in range(8):
        p.I(f'ds_read_b128 {vr(QF+4*s2,4)}, v29 offset:{s2*1024}')
        p.I(kr[s2])
    p.I(f'v_mul_u32_u24 v7, {OPT["ska"]+1}, v{V_SK}')
    p.I(f'v_sub_u32 v{V_TH}, 10, v7')
    interleave(qk0, kreads(KF, V_KL0, V_KL1, 8192) + release() + [flag_read()])
    p.label('L_ATT')
    p.lds_q = []
    for r in range(64): p.I(f'v_mov_b32 v{OA+r}, 0')
    p.I(f'v_mov_b32 v{V_L0}, 0')
    p.I(f'v_mov_b32 v{V_L1}, 0')
    def maxtree(S):
        return [f'v_max3_f32 v{V_MX}, v{S}, v{S+1}, v{S+2}', f'v_max3_f32 v{V_T0}, v{S+3}, v{S+4}, v{S+5}',
             f'v_max3_f32 v{V_MX}, v{V_MX}, v{S+6}, v{S+7}', f'v_max3_f32 v{V_T0}, v{V_T0}, v{S+8}, v{S+9}',
             f'v_max3_f32 v{V_MX}, v{V_MX}, v{S+10}, v{S+11}', f'v_max3_f32 v{V_T0}, v{V_T0}, v{S+12}, v{S+13}',
             f'v_max3_f32 v{V_MX}, v{V_MX}, v{S+14}, v{S+15}', f'v_max_f32 v{V_MX}, v{V_MX}, v{V_T0}']
    for i in maxtree(S0): p.I(i)
    p.I(f'v_mov_b32 v{V_T0}, v{V_MX}')
    p.I(f'v_permlane32_swap_b32 v{V_MX}, v{V_T0}')
    p.I(f'v_max_f32 v{V_MX}, v{V_MX}, v{V_T0}')
    for r in range(16):
        p.I(f'v_sub_f32 v{S0+r}, v{S0+r}, v{V_MX}')
        p.I(f'v_sub_f32 v{NEGM+r}, 0, v{V_MX}')
    S_KB, S_VB, S_THR = 86, 87, 88
    p.I(f's_mov_b32 s{S_I}, 0')
    p.I(f's_mov_b32 s{S_KB}, 16384')
    p.I(f's_mov_b32 s{S_VB}, {VTOP-16384}')
    p.I(f's_mov_b32 s{S_THR}, {"0x7f800000" if OPT["nochk"] else f32(THR)}')
    p.I('s_waitcnt lgkmcnt(0)')
    rare = []
    def phaseA(Scur, Snext, voff, do_qk):
        flag_check()
        m = [f'{MF} {vr(Snext,16)}, {vr(KF+4*s2,4)}, {vr(QF+4*s2,4)}, {vr(NEGM,16) if s2 == 0 else vr(Snext,16)}' for s2 in range(8)]
        rd = [f'ds_read_b64_tr_b16 {vr(VF+16*s+4*t+2*u,2)}, v{V_VA} offset:{voff+s*4096+u*2048+t*256}' for s in range(2) for t in range(4) for u in range(2)]
        f = []
        for k in range(8):
            f += [rd[2*k], rd[2*k+1], f'v_exp_f32 v{Scur+2*k}, v{Scur+2*k}', f'v_exp_f32 v{Scur+2*k+1}, v{Scur+2*k+1}']
            if k > 0: f.append(f'v_cvt_pk_bf16_f32 v{PP+k-1}, v{Scur+2*k-2}, v{Scur+2*k-1}')
        f.append(f'v_cvt_pk_bf16_f32 v{PP+7}, v{Scur+14}, v{Scur+15}')
        if do_qk: interleave(m, f)
        else:
            for i in f: p.I(i)
    def phaseB(Scur, Snext, koff, do_k, do_chk, more):
        m = [f'{MF} {vr(OA+16*t,16)}, {vr(VF+16*s+4*t,4)}, {vr(PP+4*s,4)}, {vr(OA+16*t,16)}' for s in range(2) for t in range(4)]
        rd = kreads(KF, V_KA0, V_KA1, koff) if do_k else []
        adds = [f'v_add_f32 v{V_L0 + (r&1)}, v{V_L0 + (r&1)}, v{Scur+r}' for r in range(16)]
        f = []
        for k in range(8):
            if rd and k < 4: f += [rd[2*k], rd[2*k+1]]
            if k == (4 if rd else 0): f += release() + ([flag_read()] if more else [f'ds_read_b32 v{V_FV}, v{V_L4} offset:0'][:0])
            f += [adds[2*k], adds[2*k+1]]
        if do_chk: f += maxtree(Snext)
        interleave(m, f)
        if do_chk:
            l, r = lab('L_RARE'), lab('L_RRET')
            rare.append((l, r, Snext))
            p.I(f'v_cmp_lt_f32 vcc, s{S_THR}, v{V_MX}')
            p.I(f's_cbranch_vccnz {l}')
            p.label(r)
    def body(last):
        p.I(f'v_add_u32 v{V_VA}, s{S_VB}, v{V_VL}')
        if not last:
            p.I(f'v_add_u32 v{V_KA0}, s{S_KB}, v{V_KL0}')
            p.I(f'v_add_u32 v{V_KA1}, s{S_KB}, v{V_KL1}')
        pp = str(OPT['pp'])[1:]
        if pp: p.I(f's_setprio {pp[0]}')
        phaseA(S0, S1, 8192, True)
        if pp: p.I(f's_setprio {pp[1]}')
        phaseB(S0, S1, 0, not last, True, True)
        if pp: p.I(f's_setprio {pp[2]}')
        phaseA(S1, S0, 0, not last)
        if pp: p.I(f's_setprio {pp[3]}')
        phaseB(S1, S0, 8192, not last, not last, not last)
    stamp(3)
    st = len(p.seq)
    p.label('L_ALOOP')
    body(False)
    p.I(f's_add_u32 s{S_KB}, s{S_KB}, 16384')
    p.I(f's_cmp_eq_u32 s{S_KB}, 81920')
    p.I(f's_cselect_b32 s{S_KB}, 0, s{S_KB}')
    p.I(f's_sub_u32 s{S_VB}, s{S_VB}, 16384')
    p.I(f's_cmp_eq_u32 s{S_VB}, {VTOP - NVS*8192 - 16384}')
    p.I(f's_cselect_b32 s{S_VB}, {VTOP-16384}, s{S_VB}')
    p.I(f's_add_u32 s{S_I}, s{S_I}, 1')
    p.I(f's_cmp_lt_u32 s{S_I}, 7')
    p.I('s_waitcnt lgkmcnt(0)')
    p.I('s_cbranch_scc1 L_ALOOP')
    b = p.seq[st:]
    check_hazards(b + b, 'aloop')
    body(True)
    if OPT['pp']: p.I('s_setprio 0')
    stamp(4)
    p.I(f'v_add_u32 v{V_FA}, {FLG}, v{V_L4}')
    p.I(f'ds_read_b32 v{V_FV}, v{V_FA} offset:2048')
    p.I(f'v_add_f32 v{V_L0}, v{V_L0}, v{V_L1}')
    p.I(f'v_mov_b32 v{V_T0}, v{V_L0}')
    p.I(f'v_permlane32_swap_b32 v{V_L0}, v{V_T0}')
    p.I(f'v_add_f32 v{V_L0}, v{V_L0}, v{V_T0}')
    p.I(f'v_rcp_f32 v{V_L0}, v{V_L0}')
    p.I(f's_mul_i32 s6, s{S_G}, 28')
    p.I(f's_and_b32 s7, s{S_IDX}, 3')
    p.I('s_mul_i32 s7, s7, 7')
    p.I('s_add_u32 s6, s6, s7')
    p.I(f's_add_u32 s6, s6, s{S_W}')
    p.I('s_lshl_b32 s4, s6, 16')
    p.I(f's_and_b32 s7, s{S_IDX}, 0xfc')
    p.I('s_lshl_b32 s5, s7, 11')
    p.I('s_add_u32 s4, s4, s5')
    p.I('s_add_u32 s5, s4, 4096')
    p.I('s_lshl_b32 s6, s6, 7')
    p.I('s_add_u32 s6, s6, s7')
    p.I(f's_add_u32 s6, s6, {FO_OFF}')
    p.label('L_MODEW')
    p.I(f'v_cmp_ne_u32 vcc, 0, v{V_FV}')
    p.I('s_cbranch_vccnz L_MODEG')
    p.I(f'ds_read_b32 v{V_FV}, v{V_FA} offset:2048')
    p.I('s_waitcnt lgkmcnt(0)')
    spin_tail('L_MODEW')
    p.label('L_MODEG')
    p.I(f'v_and_b32 v7, 2, v{V_FV}')
    p.I(f'v_and_b32 v{V_TOK}, -16, v{V_FV}')
    p.I('v_cmp_eq_u32 vcc, 2, v7')
    p.I('v_mov_b32 v7, 0')
    p.I('s_cbranch_vccz L_OSLOW')
    def ostore(fl):
        for t in range(4):
            for r in range(16): p.I(f'v_mul_f32 v{OA+16*t+r}, v{OA+16*t+r}, v{V_L0}')
            for r in range(8): p.I(f'v_cvt_pk_bf16_f32 v{QF+8*t+r}, v{OA+16*t+2*r}, v{OA+16*t+2*r+1}')
            for s in range(2):
                f = 2*t+s
                if not OPT['skip'] & 4: p.I(f'buffer_store_dwordx4 {vr(QF+8*t+4*s,4)}, v{V_L16}, {sr(SRD_WS,4)}, s{4 if f<4 else 5} offen offset:{(f&3)*1024}{fl or (" " + OPT["ofl"])}')
        p.I('s_waitcnt vmcnt(0)')
        p.I(f'buffer_store_dword v{V_TOK}, v7, {sr(SRD_WS,4)}, s6 offen{fl}')
    ostore('')
    p.I('s_branch L_P2')
    p.label('L_OSLOW')
    ostore(' sc1')
    p.label('L_P2')
    stamp(5)
    p.I(f's_cmp_ge_u32 s{S_W}, 4')
    p.I('s_cbranch_scc1 L_P2IDLE')
    ACC = 192
    AS = [40, 56, 72, 88]; BS = [104, 112, 120, 128]
    V_AL, V_BL, V_AA, V_BA = 10, 11, 12, 13
    S_SA, S_SB = 86, 87
    for r in range(64): p.I(f'v_mov_b32 v{ACC+r}, 0')
    for r in range(32): p.I(f'v_mov_b32 v{AS[2]+r}, 0')
    for r in range(16): p.I(f'v_mov_b32 v{BS[2]+r}, 0')
    p.I('v_and_b32 v7, 1, v2')
    p.I('v_lshlrev_b32 v7, 5, v7')
    p.I('v_and_b32 v29, 1, v4')
    p.I('v_lshl_add_u32 v7, v29, 4, v7')
    p.I('v_lshrrev_b32 v30, 1, v2')
    p.I('v_lshl_add_u32 v7, v30, 3, v7')
    p.I('v_lshl_add_u32 v7, v3, 6, v7')
    p.I(f'v_mov_b32 v{V_TH}, 27')
    p.I(f'v_mov_b32 v{V_FV}, 0')
    p.I(f's_mov_b32 s{S_I}, 0')
    p.I(f's_cmp_ge_u32 s{S_IDX}, 28')
    p.I('s_cbranch_scc1 L_P2T2')
    RG = {1: dict(a0=49152, astep=16384, aend=81920, awrap=0, b0=98304, bstep=16384, bend=163840, na=5, nb=4),
          2: dict(a0=VTOP-8192, astep=-8192, aend=VTOP-9*8192, awrap=VTOP-8192, b0=0, bstep=28672, bend=86016, na=8, nb=3)}
    def adv(sreg, step, end, wrap):
        l = [f's_add_u32 s{sreg}, s{sreg}, {step}' if step > 0 else f's_sub_u32 s{sreg}, s{sreg}, {-step}',
             f's_cmp_eq_u32 s{sreg}, {end}', f's_cselect_b32 s{sreg}, {wrap}, s{sreg}']
        return l
    def variant(T):
        R = RG[T]
        p.I(f'v_lshl_add_u32 v{V_AL}, v5, {10 if T == 1 else 9}, v7')
        p.I(f's_lshl_b32 s4, s{S_W}, {12 if T == 1 else 13}')
        p.I(f'v_add_u32 v{V_BL}, s4, v{V_L16}')
        p.I(f's_mov_b32 s{S_SA}, {R["a0"]}')
        p.I(f's_mov_b32 s{S_SB}, {R["b0"]}')
        def reads(s):
            A = AS[s]; B = BS[s]
            if T == 1:
                a = [f'ds_read_b64_tr_b16 {vr(A+4*t+2*u,2)}, v{V_AA} offset:{s*4096+u*2048+t*256}' for t in range(4) for u in range(2)]
                b = [f'ds_read_b128 {vr(B,4)}, v{V_BA} offset:{s*1024}']
            else:
                a = [f'ds_read_b64_tr_b16 {vr(A+4*t+2*u,2)}, v{V_AA} offset:{s*2048+u*1024+t*256}' for t in range(2) for u in range(2)]
                b = [f'ds_read_b128 {vr(B+4*q,4)}, v{V_BA} offset:{s*1024+q*4096}' for q in range(2)]
            return b[:1] + a + b[1:]
        def mf(s):
            A = AS[s]; B = BS[s]
            if T == 1: return [f'{MF} {vr(ACC+16*t,16)}, {vr(A+4*t,4)}, {vr(B,4)}, {vr(ACC+16*t,16)}' for t in range(4)]
            return [f'{MF} {vr(ACC+16*(2*q+t),16)}, {vr(A+4*t,4)}, {vr(B+4*q,4)}, {vr(ACC+16*(2*q+t),16)}' for q in range(2) for t in range(2)]
        p.I(f'v_add_u32 v{V_AA}, s{S_SA}, v{V_AL}')
        p.I(f'v_add_u32 v{V_BA}, s{S_SB}, v{V_BL}')
        flag_check()
        st = len(p.seq)
        p.label(f'L_P2LOOP{T}')
        rd = reads(0) + reads(1) + reads(2) + reads(3)
        n = len(rd) // 3
        n0 = min(n, 2 * len(reads(0)))
        grp(mf(2), rd[:n0], 3)
        n1 = min(2 * n, 3 * len(reads(0)))
        grp(mf(3), rd[n0:n1], 3)
        grp(mf(0), rd[n1:] + [flag_read()], 3)
        m = mf(1)
        p.I(m[0])
        for i in adv(S_SA, R['astep'], R['aend'], R['awrap']) + [f'v_add_u32 v{V_TH}, 1, v{V_TH}', f's_add_u32 s{S_I}, s{S_I}, 1']: p.I(i)
        p.I(m[1])
        for i in adv(S_SB, R['bstep'], R['bend'], R['b0']): p.I(i)
        p.I(f's_cmp_ge_u32 s{S_I}, 16')
        p.I('s_waitcnt lgkmcnt(0)')
        p.I('s_barrier')
        p.I(m[2])
        p.I(f's_cbranch_scc1 L_P2X{T}')
        p.I(f'v_add_u32 v{V_AA}, s{S_SA}, v{V_AL}')
        p.I(f'v_add_u32 v{V_BA}, s{S_SB}, v{V_BL}')
        flag_check()
        p.I(m[3])
        p.I(f's_branch L_P2LOOP{T}')
        b = p.seq[st:]
        check_hazards(b + b, f'p2loop{T}')
        p.label(f'L_P2X{T}')
        p.I(m[3])
        for i in mf(2) + mf(3): p.I(i)
    variant(1)
    p.I('s_branch L_XCH')
    p.label('L_P2T2')
    variant(2)
    p.label('L_XCH')
    stamp(6)
    p.I(f's_cmp_eq_u32 s{S_W}, s{S_KQ}')
    p.I('s_cbranch_scc1 L_OWN')
    p.I(f's_lshl_b32 s4, s{S_GRP}, 2')
    p.I(f's_add_u32 s4, s4, s{S_W}')
    p.I('s_lshl_b32 s5, s4, 7')
    p.I('s_lshl_b32 s4, s4, 2')
    p.I(f's_add_u32 s4, s4, s{S_KQ}')
    p.I('s_lshl_b32 s4, s4, 14')
    p.I(f's_add_u32 s4, s4, {P_OFF}')
    BF = OPT['pbf']; NST = 2 if BF else 4
    for t in range(4):
        if t: p.I('s_add_u32 s4, s4, 4096')
        if BF:
            for r in range(8): p.I(f'v_cvt_pk_bf16_f32 v{ACC+16*t+r}, v{ACC+16*t+2*r}, v{ACC+16*t+2*r+1}')
        for g in range(NST):
            p.I(f'buffer_store_dwordx4 {vr(ACC+16*t+4*g,4)}, v{V_L16}, {sr(SRD_WS,4)}, s4 offen offset:{g*1024} sc1')
    p.I(f's_lshl_b32 s4, s{S_KQ}, 2')
    p.I('s_add_u32 s4, s4, s5')
    p.I(f's_add_u32 s4, s4, {FP_OFF}')
    p.I('v_mov_b32 v7, 0')
    p.I('s_waitcnt vmcnt(0)')
    p.I(f'buffer_store_dword v{V_TOK}, v7, {sr(SRD_WS,4)}, s4 offen sc1')
    finish()
    p.label('L_OWN')
    for g in range(16): p.I(f'ds_write_b128 v{V_L16}, {vr(ACC+4*g,4)} offset:{g*1024}')
    p.I(f'v_mov_b32 v{V_DV}, 60')
    p.I(f'ds_write_b32 v{V_DA}, v{V_DV}')
    p.I('s_waitcnt lgkmcnt(0)')
    finish()
    p.label('L_P2IDLE')
    p.lds_q = []
    for _ in range(16): p.I('s_barrier')
    p.label('L_FINAL')
    stamp(6)
    p.I(f's_sub_u32 s14, s{S_W}, 4')
    p.I(f's_lshl_b32 s4, s{S_GRP}, 2')
    p.I(f's_add_u32 s4, s4, s{S_KQ}')
    p.I('s_lshl_b32 s5, s4, 7')
    p.I(f's_add_u32 s5, s5, {FP_OFF}')
    p.I('s_lshl_b32 s4, s4, 16')
    p.I('s_lshl_b32 s6, s14, 12')
    p.I('s_add_u32 s4, s4, s6')
    p.I(f's_add_u32 s4, s4, {P_OFF}')
    p.I('v_lshlrev_b32 v7, 2, v2')
    p.I(f'v_cmp_ne_u32 s[86:87], s{S_KQ}, v2')
    p.I(f's_lshl_b32 s6, s{S_KQ}, 8')
    p.I(f's_add_u32 s6, s6, {FLG+256}')
    p.I('v_mov_b32 v30, s6')
    p.label('L_FP1')
    p.I(f'buffer_load_dword v29, v7, {sr(SRD_WS,4)}, s5 offen sc1')
    p.I('s_waitcnt vmcnt(0)')
    p.I(f'v_cmp_ne_u32 vcc, v{V_TOK}, v29')
    p.I('s_and_b64 vcc, vcc, s[86:87]')
    p.I('s_cbranch_vccz L_GO')
    spin_tail('L_FP1', 2)
    p.label('L_GO')
    stamp(7)
    for k in range(1, 4):
        p.I(f's_add_u32 s6, s{S_KQ}, {k}')
        p.I('s_and_b32 s6, s6, 3')
        p.I('s_lshl_b32 s6, s6, 14')
        p.I('s_add_u32 s6, s6, s4')
        for g in range(NST):
            p.I(f'buffer_load_dwordx4 {vr((64 if BF else ACC)+16*k+4*g,4)}, v{V_L16}, {sr(SRD_WS,4)}, s6 offen offset:{g*1024} sc1')
    p.label('L_FW1')
    p.I('ds_read_b32 v29, v30')
    p.I('s_waitcnt lgkmcnt(0)')
    p.I('v_cmp_gt_u32 vcc, 60, v29')
    p.I('s_cbranch_vccz L_FW2')
    spin_tail('L_FW1', 0)
    p.label('L_FW2')
    p.I('s_lshl_b32 s6, s14, 12')
    p.I(f'v_add_u32 v30, s6, v{V_L16}')
    for g in range(4): p.I(f'ds_read_b128 {vr(ACC+4*g,4)}, v30 offset:{g*1024}')
    p.I('s_movk_i32 s5, 1152')
    p.I('v_mul_lo_u32 v7, v6, s5')
    p.I('v_lshl_add_u32 v7, v5, 5, v7')
    p.I(f's_lshl_b32 s4, s{S_KQ}, 1')
    p.I('s_lshr_b32 s5, s14, 1')
    p.I('s_add_u32 s4, s4, s5')
    p.I('s_and_b32 s6, s14, 1')
    p.I(f's_cmp_ge_u32 s{S_IDX}, 28')
    p.I(f's_cselect_b32 s4, s4, s{S_KQ}')
    p.I('s_cselect_b32 s6, s6, s14')
    p.I('s_cmp_ge_u32 s4, 7')
    p.I('s_cbranch_scc1 L_FIN')
    p.I(f's_add_u32 s4, s4, s{S_Q0}')
    p.I('s_and_b32 s5, s2, 1')
    p.I('s_mul_i32 s5, s5, 28')
    p.I('s_add_u32 s4, s4, s5')
    p.I(f's_mul_i32 s4, s4, {32*1152}')
    p.I('s_lshl_b32 s6, s6, 6')
    p.I('s_add_u32 s4, s4, s6')
    p.I(f's_add_u32 s4, s4, s{S_N0}')
    p.I('s_waitcnt vmcnt(0)')
    if BF:
        for k in range(1, 4):
            for r in range(8):
                p.I(f'v_lshlrev_b32 v{ACC+16*k+2*r}, 16, v{64+16*k+r}')
                p.I(f'v_and_b32 v{ACC+16*k+2*r+1}, 0xffff0000, v{64+16*k+r}')
    for r in range(16):
        p.I(f'v_add_f32 v{ACC+r}, v{ACC+r}, v{ACC+16+r}')
        p.I(f'v_add_f32 v{ACC+32+r}, v{ACC+32+r}, v{ACC+48+r}')
    for r in range(16): p.I(f'v_add_f32 v{ACC+r}, v{ACC+r}, v{ACC+32+r}')
    for r in range(8): p.I(f'v_cvt_pk_bf16_f32 v{40+r}, v{ACC+2*r}, v{ACC+2*r+1}')
    p.I(f'buffer_store_dwordx4 v[40:43], v7, {sr(SRD_OUT,4)}, s4 offen')
    p.I(f'buffer_store_dwordx4 v[44:47], v7, {sr(SRD_OUT,4)}, s4 offen offset:16')
    p.label('L_FIN')
    finish()
    p.auto = False
    for l, ret, S in rare:
        p.label(l)
        p.I('s_nop 15'); p.I('s_nop 15')
        p.I(f'v_mov_b32 v{V_T0}, v{V_MX}')
        p.I('s_nop 1')
        p.I(f'v_permlane32_swap_b32 v{V_MX}, v{V_T0}')
        p.I('s_nop 1')
        p.I(f'v_max3_f32 v{V_MX}, v{V_MX}, v{V_T0}, 0')
        p.I(f'v_exp_f32 v{V_T0}, -v{V_MX}')
        for r in range(16):
            p.I(f'v_sub_f32 v{S+r}, v{S+r}, v{V_MX}')
            p.I(f'v_sub_f32 v{NEGM+r}, v{NEGM+r}, v{V_MX}')
        p.I(f'v_mul_f32 v{V_L0}, v{V_L0}, v{V_T0}')
        p.I(f'v_mul_f32 v{V_L1}, v{V_L1}, v{V_T0}')
        for r in range(64): p.I(f'v_mul_f32 v{OA+r}, v{OA+r}, v{V_T0}')
        p.I('s_nop 3')
        p.I(f's_branch {ret}')
    for l, ret in spins:
        p.label(l)
        p.I(flag_read())
        p.I('s_waitcnt lgkmcnt(0)')
        p.I(f'v_cmp_gt_i32 vcc, v{V_TH}, v{V_FV}')
        p.I(f's_cbranch_vccz {ret}')
        spin_tail(l)
    p.auto = True

    p.label('L_LOADER')
    p.lds_q = []
    VP, VX, VW, V_QA, V_QV, V_Z = 8, 12, 16, 20, 21, 23
    p.I('v_and_b32 v29, 1, v4')
    p.I('v_lshl_add_u32 v7, v29, 2, v3')
    p.I('s_movk_i32 s5, 1152')
    p.I('v_mul_lo_u32 v7, v7, s5')
    p.I('v_lshl_add_u32 v7, v5, 6, v7')
    p.I('v_xor_b32 v30, v2, v29')
    p.I(f'v_lshl_add_u32 v{VX}, v30, 4, v7')
    p.I(f'v_xor_b32 v{VX+1}, 32, v{VX}')
    p.I(f'v_add_u32 v{VX+2}, 16384, v{VX}')
    p.I(f'v_add_u32 v{VX+3}, 24576, v{VX+1}')
    p.I(f'v_add_u32 v{VX+1}, 8192, v{VX+1}')
    p.I('v_lshl_add_u32 v7, v4, 2, v2')
    p.I('v_lshlrev_b32 v7, 4, v7')
    p.I(f'v_lshl_add_u32 v{VW}, v3, 13, v7')
    for q in range(1, 4): p.I(f'v_add_u32 v{VW+q}, {q*(32768-1024)}, v{VW}')
    S_XB, S_WB, S_XO, S_WO = 85, 86, 87, 88
    p.I(f's_mul_i32 s{S_XB}, s{S_B}, 258048')
    p.I(f's_lshl_b32 s{S_WB}, s{S_H}, 8')
    p.I(f'v_mov_b32 v{V_Z}, 0')
    def publish(val):
        p.I(f's_mov_b32 m0, {FLG}')
        if isinstance(val, int): p.I(f's_add_u32 s13, s15, {4*val}')
        else:
            p.I(f's_lshl_b32 s13, {val}, 2')
            p.I('s_add_u32 s13, s13, s15')
        p.I(f'buffer_load_dword v{V_Z}, {sr(SRD_WS,4)}, s13 offen lds')
    def wait_done(val):
        a, bb = lab('L_LW'), lab('L_LX')
        p.label(a)
        p.I(f'ds_read_b32 v{V_QV}, v{V_QA}')
        p.I('s_waitcnt lgkmcnt(0)')
        p.I(f'v_cmp_gt_u32 vcc, {val}, v{V_QV}')
        p.I(f's_cbranch_vccz {bb}')
        spin_tail(a)
        p.label(bb)
    def stage(slot, lw):
        p.I(f's_lshl_b32 s{S_XO}, s{S_KS}, 7')
        p.I(f's_add_u32 s{S_XO}, s{S_XO}, s{S_XB}')
        p.I(f's_lshl_b32 s{S_WO}, s{S_KS}, 19')
        p.I(f's_add_u32 s{S_WO}, s{S_WO}, s{S_WB}')
        for kind, g in [('w', 0), ('w', 1)] + [('x', w) for w in range(7)] + [('w', 2), ('w', 3)]:
            if lw < 63: p.I(f's_waitcnt vmcnt({lw})')
            if kind == 'x':
                p.I(f's_mov_b32 m0, {XS[slot] + g*4096}')
                p.I(f's_add_u32 s13, s{S_XO}, {g*36864}')
                for q in range(4): p.I(f'buffer_load_dwordx4 v{VX+q}, {sr(SRD_X,4)}, s13 offen offset:{q*1024} lds')
            else:
                p.I(f's_mov_b32 m0, {WSL[slot] + g*4096}')
                p.I(f's_add_u32 s13, s{S_WO}, {g*131072}')
                for q in range(4): p.I(f'buffer_load_dwordx4 v{VW+q}, {sr(SRD_WQ,4)}, s13 offen offset:{q*1024} lds')
        p.I(f's_add_u32 s{S_KS}, s{S_KS}, 1')
        p.I(f's_cmp_eq_u32 s{S_KS}, 9')
        p.I(f's_cselect_b32 s{S_KS}, 0, s{S_KS}')
    p.I('v_min_u32 v7, 6, v0')
    p.I('v_lshlrev_b32 v7, 8, v7')
    p.I(f'v_add_u32 v{V_QA}, {FLG+256}, v7')
    for slot in range(3):
        stage(slot, 63)
        if slot == 0: p.I('s_barrier')
        publish(slot + 1)
    p.I(f's_mov_b32 s{S_I}, 3')
    p.label('L_LQ')
    for slot in range(3):
        p.I(f's_sub_u32 s5, s{S_I}, 2')
        wait_done('s5')
        stage(slot, OPT['lw'])
        p.I(f's_add_u32 s{S_I}, s{S_I}, 1')
        publish(f's{S_I}')
    p.I(f's_cmp_lt_u32 s{S_I}, 9')
    p.I('s_cbranch_scc1 L_LQ')
    stamp(2)
    for j in range(4):
        p.I(f'v_xor_b32 v7, {j}, v2')
        p.I('v_lshl_add_u32 v7, v4, 2, v7')
        p.I('v_lshlrev_b32 v7, 4, v7')
        p.I(f'v_lshl_add_u32 v{VP+j}, v3, 8, v7')
    p.I(f's_lshl_b32 s4, s{S_B}, 5')
    p.I(f's_add_u32 s4, s4, s{S_H}')
    p.I('s_lshl_b32 s12, s4, 17')
    def ld(kind, n):
        lds = (n % 10) * 8192 if kind == 'K' else VTOP - 8192 * (1 + n % NVS)
        for half in range(2):
            p.I(f's_mov_b32 m0, {lds + half*4096}')
            p.I(f's_add_u32 s13, s12, {n*8192 + half*4096}')
            for q in range(4):
                p.I(f'buffer_load_dwordx4 v{VP + q if kind == "K" else VP}, {sr(SRD_K if kind == "K" else SRD_V,4)}, s13 offen offset:{q*1024} nt lds')
    def qneed(lo, hi):
        need = 0
        for k in range(3):
            for base, size in ((XS[k], 28672), (WSL[k], 16384)):
                if lo < base + size and base < hi: need = max(need, 7 + k)
        if lo < HO + 24576 and HO < hi: need = max(need, 10)
        return need
    def touch(qbs):
        p.I(f's_mul_i32 s6, s{S_G}, 28')
        p.I(f's_and_b32 s7, s{S_IDX}, 3')
        p.I('s_mul_i32 s7, s7, 7')
        p.I('s_add_u32 s6, s6, s7')
        p.I('s_lshl_b32 s6, s6, 16')
        p.I(f's_and_b32 s7, s{S_IDX}, 0xfc')
        p.I('s_lshl_b32 s7, s7, 11')
        p.I('s_add_u32 s6, s6, s7')
        for qb in qbs:
            for half in range(2):
                if OPT['xw'] < 63: p.I(f's_waitcnt vmcnt({OPT["xw"]})')
                p.I(f's_add_u32 s13, s6, {qb*65536 + half*4096}')
                for q in range(4): p.I(f'buffer_load_dwordx4 {vr(40+4*q,4)}, v{V_L16}, {sr(SRD_WS,4)}, s13 offen offset:{q*1024} sc1')
    got = 6
    tq = 0
    V_R = 24
    p.I(f'buffer_load_dword v{V_TOK}, v{V_Z}, {sr(SRD_DBG,4)}, 0 offen sc1')
    def tok_step1():
        p.I('s_waitcnt vmcnt(40)')
        p.label('L_TK0')
        p.I(f'v_cmp_ne_u32 vcc, 0, v{V_TOK}')
        p.I('s_cbranch_vccnz L_TK1')
        p.I(f'buffer_load_dword v{V_TOK}, v{V_Z}, {sr(SRD_DBG,4)}, 0 offen sc1')
        p.I('s_waitcnt vmcnt(0)')
        spin_tail('L_TK0', 8)
        p.label('L_TK1')
        p.I('s_getreg_b32 s5, hwreg(HW_REG_XCC_ID, 0, 4)')
        p.I(f'v_or_b32 v{V_R}, s5, v{V_TOK}')
        p.I(f's_lshl_b32 s4, s{S_G}, 7')
        p.I(f's_lshl_b32 s5, s{S_IDX}, 2')
        p.I('s_add_u32 s4, s4, s5')
        p.I(f's_add_u32 s4, s4, {REC_OFF}')
        p.I(f'buffer_store_dword v{V_R}, v{V_Z}, {sr(SRD_WS,4)}, s4 offen sc1')
    def tok_step2():
        p.I(f's_lshl_b32 s4, s{S_G}, 7')
        p.I(f's_add_u32 s4, s4, {REC_OFF}')
        p.I('v_lshlrev_b32 v7, 2, v6')
        p.I(f'buffer_load_dword v{V_R+1}, v7, {sr(SRD_WS,4)}, s4 offen sc1')
    def tok_step3():
        p.I('s_waitcnt vmcnt(32)')
        p.I(f'v_cmp_ne_u32 vcc, v{V_R}, v{V_R+1}')
        p.I('s_cmp_eq_u64 vcc, 0')
        p.I(f's_cselect_b32 s5, {1 if OPT["slow"] else 2}, 1')
        p.I(f'v_or_b32 v29, s5, v{V_TOK}')
        p.I(f'ds_write_b32 v{V_DA}, v29 offset:2048')
    for kind, n in [('K', 0), ('K', 1)] + [o for u in range(16) for o in ([('V', u)] + ([('K', u+2)] if u + 2 < 16 else []))]:
        if kind == 'K':
            lds = (n % 10) * 8192
            need = qneed(lds, lds + 8192)
            if n >= 10: need = max(need, 10 if n - 10 < 2 else 11 + n - 12)
            full = 10 if n == 1 else (11 + n - 2 if n >= 2 else None)
        else:
            lds = VTOP - 8192 * (1 + n % NVS)
            need = qneed(lds, lds + 8192)
            if n >= NVS: need = max(need, 11 + n - NVS)
            full = 11 + n if n + 2 >= 16 else None
        if need > got:
            wait_done(need); got = need
        ld(kind, n)
        if full is not None:
            publish(full)
            if full == 12: tok_step1()
            if full == 21: tok_step2()
            if full == 23: tok_step3()
            if OPT['touch'] >= 0 and full - 11 >= OPT['touch'] and tq < 7: touch([tq]); tq += 1
    if OPT['touch'] >= 0 and tq < 7: touch(range(tq, 7))
    stamp(3)
    S_WO2, S_OO, S_LA, S_LB = 85, 86, 87, 88
    p.I(f's_mul_i32 s{S_WO2}, s{S_KQ}, {1024*1152}')
    p.I(f's_add_u32 s{S_WO2}, s{S_WO2}, s{S_N0}')
    p.I(f's_mul_i32 s14, s{S_G}, 28')
    p.I(f's_add_u32 s14, s14, s{S_Q0}')
    p.I(f's_lshl_b32 s{S_OO}, s14, 16')
    p.I('s_lshl_b32 s14, s14, 7')
    p.I(f's_add_u32 s14, s14, {FO_OFF}')
    p.I('s_movk_i32 s5, 1152')
    p.I(f's_cmp_ge_u32 s{S_IDX}, 28')
    p.I('s_cbranch_scc1 L_L2')
    def lvariant(T):
        R = RG[T]
        if T == 1:
            p.I('v_mul_lo_u32 v7, v3, s5')
            p.I('v_lshl_add_u32 v29, v4, 2, v2')
            p.I(f'v_lshl_add_u32 v{VW}, v29, 4, v7')
            for q in range(1, 4): p.I(f'v_add_u32 v{VW+q}, {q*(4*1152-1024)}, v{VW}')
            ngw, rows, nq = 4, 16, 4
            pre_need = [16, 18, 20, 22, 24]
        else:
            p.I('v_lshl_add_u32 v7, v5, 2, v3')
            p.I('v_mul_lo_u32 v7, v7, s5')
            p.I('v_and_b32 v29, 1, v4')
            p.I('v_lshl_add_u32 v29, v29, 2, v2')
            p.I(f'v_lshl_add_u32 v{VW}, v29, 4, v7')
            for q in range(1, 4): p.I(f'v_add_u32 v{VW+q}, {q*(8*1152-1024)}, v{VW}')
            ngw, rows, nq = 2, 32, 7
            pre_need = [19 + i for i in range(8)]
        p.I(f's_mov_b32 s{S_LA}, {R["a0"]}')
        p.I(f's_mov_b32 s{S_LB}, {R["b0"]}')
        def wo_stage():
            for g in range(0 if OPT['skip'] & 1 else ngw):
                p.I(f's_add_u32 m0, s{S_LA}, {g*4096}')
                p.I(f's_add_u32 s13, s{S_WO2}, {g*rows*1152}')
                for q in range(4): p.I(f'buffer_load_dwordx4 v{VW+q}, {sr(SRD_WO,4)}, s13 offen offset:{q*1024} lds')
            p.I(f's_add_u32 s{S_WO2}, s{S_WO2}, {64*1152}')
            for i in adv(S_LA, R['astep'], R['aend'], R['awrap']): p.I(i)
        def o_stage():
            for g in range(0 if OPT['skip'] & 2 else nq):
                p.I(f's_add_u32 m0, s{S_LB}, {g*4096}')
                p.I(f's_add_u32 s13, s{S_OO}, {g << 16}')
                for q in range(4): p.I(f'buffer_load_dwordx4 v{V_L16}, {sr(SRD_WS,4)}, s13 offen offset:{q*1024} {"sc1 " if OPT["osc"] else ""}lds')
            p.I(f's_add_u32 s{S_OO}, s{S_OO}, 4096')
            for i in adv(S_LB, R['bstep'], R['bend'], R['b0']): p.I(i)
            publish(f's{S_I}')
            p.I(f's_add_u32 s{S_I}, s{S_I}, 1')
        step = pre_need[1] - pre_need[0]
        p.I(f's_mov_b32 s6, {pre_need[0]}')
        l = lab('L_PRE')
        p.label(l)
        wait_done('s6')
        if OPT['xw'] < 63: p.I(f's_waitcnt vmcnt({max(OPT["xw"]-12, 0)})')
        wo_stage()
        p.I(f's_add_u32 s6, s6, {step}')
        p.I(f's_cmp_le_u32 s6, {pre_need[-1]}')
        p.I(f's_cbranch_scc1 {l}')
        if OPT['wowarm']:
            p.I(f's_mul_i32 s4, s{S_KQ}, {1024*1152}')
            p.I(f's_mul_i32 s5, s{S_IDX}, 25344')
            p.I('s_add_u32 s4, s4, s5')
            for j in range(7):
                if OPT['xw'] < 63: p.I(f's_waitcnt vmcnt({OPT["xw"]})')
                p.I(f's_add_u32 s5, s4, {320*1152 + j*4096}')
                for q in range(4 if j < 6 else 1): p.I(f'buffer_load_dwordx4 {vr(40+4*q,4)}, v{V_L16}, {sr(SRD_WO,4)}, s5 offen offset:{q*1024}')
        wait_done(26)
        stamp(4)
        p.I('v_lshrrev_b32 v7, 3, v0')
        p.I(f'v_min_u32 v7, {nq-1}, v7')
        p.I('v_lshlrev_b32 v7, 7, v7')
        p.I('v_and_b32 v29, 7, v0')
        p.I('v_lshl_add_u32 v7, v29, 2, v7')
        l, g2 = lab('L_OF'), lab('L_OG')
        p.label(l)
        p.I(f'buffer_load_dword v29, v7, {sr(SRD_WS,4)}, s14 offen sc1')
        p.I('s_waitcnt vmcnt(0)')
        p.I(f'v_cmp_ne_u32 vcc, v{V_TOK}, v29')
        p.I(f's_cbranch_vccz {g2}')
        spin_tail(l, 1)
        p.label(g2)
        stamp(5)
        p.I(f's_mov_b32 s{S_I}, 27')
        l = lab('L_O0')
        p.label(l)
        o_stage()
        p.I(f's_cmp_lt_u32 s{S_I}, {27 + R["nb"]}')
        p.I(f's_cbranch_scc1 {l}')
        p.I('s_mov_b32 s6, 0')
        l, a1, a2 = lab('L_OM'), lab('L_OA'), lab('L_OB')
        p.label(l)
        p.I('s_barrier')
        p.I(f's_cmp_ge_u32 s6, {16 - R["nb"]}')
        p.I(f's_cbranch_scc1 {a1}')
        o_stage()
        p.label(a1)
        p.I(f's_cmp_ge_u32 s6, {16 - R["na"]}')
        p.I(f's_cbranch_scc1 {a2}')
        wo_stage()
        p.label(a2)
        p.I('s_add_u32 s6, s6, 1')
        p.I('s_cmp_lt_u32 s6, 16')
        p.I(f's_cbranch_scc1 {l}')
        p.I('s_branch L_FINAL')
    lvariant(1)
    p.label('L_L2')
    lvariant(2)
    p.label('L_END')
    p.I('s_endpgm')
    check_hazards(p.seq, 'all')
    return p.text(), KN

def main(out):
    t, kn = gen()
    hdr = open('cdna_kernels/' + NAME + '.s.ref').read().split('; Override')[0]
    s = hdr + '; @launch grid=(256,1,1) block=(512,1,1) lds=163840\n'
    s += '.amdgcn_target "amdgcn-amd-amdhsa--gfx950"\n.text\n' + t
    s += f'''.section .rodata,"a"
.p2align 6
.amdhsa_kernel {kn}
  .amdhsa_next_free_vgpr 256
  .amdhsa_next_free_sgpr 100
  .amdhsa_accum_offset 256
  .amdhsa_group_segment_fixed_size 0
  .amdhsa_kernarg_size 64
  .amdhsa_user_sgpr_count 2
  .amdhsa_user_sgpr_kernarg_segment_ptr 1
  .amdhsa_system_sgpr_workgroup_id_x 1
.end_amdhsa_kernel
'''
    open(out, 'w').write(s)

if __name__ == '__main__':
    for a in sys.argv[2:]:
        k, v = a.split('=')
        OPT[k] = int(v) if v.lstrip('-').isdigit() else v
    main(sys.argv[1])
```

```python
import sys, struct
from asmlib import *

def f32(x): return '0x%08x' % struct.unpack('<I', struct.pack('<f', x))[0]
NAME = 'standalone__mha_block_cached__near_ridge'
SCALE = (128 ** -0.5) * 1.4426950408889634
THR = 8.0
X_BYTES = 8*224*576*2
KV_BYTES = 8*32*512*128*2
W_BYTES = 576*4096*2
T_OFF = 32 << 20
FO_OFF = 33 << 20
FP_OFF = FO_OFF + 65536
REC_OFF = FO_OFF + 131072
P_OFF = 40 << 20
WS_BYTES = 64 << 20

OPT = dict(cpf=1, xw=63, touch=99, skip=0, ofl='', osc=0, stamp=0, lw=12, skq=1, ska=2, pp='', pbf=0, slow=0, nochk=0, wowarm=1, wopre=1)

def vr(a, n=1): return f'v{a}' if n == 1 else f'v[{a}:{a+n-1}]'
def sr(a, n=1): return f's{a}' if n == 1 else f's[{a}:{a+n-1}]'
MF = 'v_mfma_f32_32x32x16_bf16'

XS = [126976, 32768, 61440]
WSL = [16384, 110592, 94208]
FLG = 90112
VTOP = 163840
NVS = 8
HO = 57344

S_W, S_B, S_H, S_I, S_KS = 3, 8, 9, 10, 11
SRD_X, SRD_WQ, SRD_K, SRD_V, SRD_WS, SRD_WO, SRD_OUT, SRD_DBG = 32, 36, 40, 44, 48, 52, 56, 60
S_SPIN = 84
S_G, S_KQ, S_IDX, S_GRP, S_Q0, S_N0 = 92, 93, 94, 95, 96, 97
SPIN_MAX = 0x200000

def gen():
    p = Prog(); p.nlab = 0
    KN = NAME + '_kernel'
    def lab(pre):
        p.nlab += 1; return f'{pre}{p.nlab}'
    def srd(dst, lo, nbytes):
        p.I(f's_mov_b32 s{dst}, s{lo}'); p.I(f's_mov_b32 s{dst+1}, s{lo+1}')
        p.I(f's_mov_b32 s{dst+2}, {nbytes}'); p.I(f's_mov_b32 s{dst+3}, 0x00020000')
    def stamp(k, real=False):
        if not OPT['stamp']: return
        p.I('s_waitcnt lgkmcnt(0)')
        p.I(f's_memrealtime s[{64+2*k}:{65+2*k}]' if real else f's_memtime s[{64+2*k}:{65+2*k}]')
        p.I('s_waitcnt lgkmcnt(0)')
    def finish():
        if OPT['stamp']:
            p.I('s_waitcnt vmcnt(0)')
            stamp(8); stamp(9, True)
            p.I('s_lshl_b32 s4, s2, 3')
            p.I(f's_add_u32 s4, s4, s{S_W}')
            p.I('s_lshl_b32 s4, s4, 6')
            p.I(f's_add_u32 s4, s4, {64<<20}')
            p.I('v_mov_b32 v1, 0')
            for k in range(10):
                p.I(f'v_mov_b32 v2, s{64+2*k}')
                p.I(f'buffer_store_dword v2, v1, {sr(SRD_WS,4)}, s4 offen offset:{4*k}')
        p.I('s_endpgm')
    def spin_tail(back, sleep=1):
        if sleep: p.I(f's_sleep {sleep}')
        p.I(f's_add_u32 s{S_SPIN}, s{S_SPIN}, 1')
        p.I(f's_cmp_lt_u32 s{S_SPIN}, {SPIN_MAX}')
        p.I(f's_cbranch_scc1 {back}')
        p.I('s_endpgm')
    def interleave(mfmas, fillers):
        n = len(mfmas); fi = 0; rem = len(fillers)
        for k, m in enumerate(mfmas):
            p.I(m)
            for _ in range((rem * (k + 1)) // n - (rem * k) // n):
                p.I(fillers[fi]); fi += 1
    def grp(m, f, per):
        fi = 0
        for k, mm in enumerate(m):
            p.I(mm)
            for _ in range(per if k < len(m) - 1 else len(f)):
                if fi < len(f): p.I(f[fi]); fi += 1

    p.raw(f'.globl {KN}\n.p2align 8\n.type {KN},@function\n{KN}:')
    p.I('s_cmp_ge_u32 s2, 256')
    p.I('s_cbranch_scc1 L_END')
    p.I('s_load_dwordx16 s[16:31], s[0:1], 0')
    p.I('v_lshrrev_b32 v1, 6, v0')
    p.I('v_and_b32 v0, 63, v0')
    p.I(f'v_readfirstlane_b32 s{S_W}, v1')
    p.I(f's_mov_b32 s{S_SPIN}, 0')
    if OPT['cpf']:
        p.I(f's_cmp_lg_u32 s{S_W}, 6')
        p.I('s_cbranch_scc1 L_NOCPF')
        p.I('s_getpc_b64 s[4:5]')
        p.label('L_PC')
        p.I(f's_sub_u32 s4, s4, L_PC-{KN}')
        p.I('s_subb_u32 s5, s5, 0')
        p.I('s_lshr_b32 s6, s2, 3')
        p.I('s_lshl_b32 s6, s6, 10')
        p.I('v_lshlrev_b32 v2, 4, v0')
        p.I('v_add_u32 v2, s6, v2')
        p.I(f'v_min_u32 v2, L_CODE_END-{KN}-16, v2')
        p.I('global_load_dwordx4 v[40:43], v2, s[4:5]')
        p.label('L_NOCPF')
    p.I(f's_and_b32 s{S_G}, s2, 7')
    p.I(f's_lshr_b32 s{S_IDX}, s2, 3')
    p.I('s_and_b32 s6, s2, 1')
    p.I(f's_and_b32 s7, s{S_IDX}, 3')
    p.I('s_lshl_b32 s4, s6, 2')
    p.I(f's_add_u32 s{S_B}, s4, s7')
    p.I(f's_lshr_b32 s{S_KQ}, s{S_G}, 1')
    p.I(f's_lshr_b32 s5, s{S_IDX}, 2')
    p.I(f's_lshl_b32 s4, s{S_KQ}, 3')
    p.I(f's_add_u32 s{S_H}, s4, s5')
    p.I('s_add_u32 s4, s5, s7')
    p.I('s_mul_i32 s13, s4, 86')
    p.I('s_lshr_b32 s13, s13, 8')
    p.I('s_mul_i32 s13, s13, 3')
    p.I('s_sub_u32 s4, s4, s13')
    p.I(f's_mul_i32 s{S_KS}, s4, 3')
    p.I(f's_lshl_b32 s{S_GRP}, s6, 5')
    p.I(f's_add_u32 s{S_GRP}, s{S_GRP}, s{S_IDX}')
    p.I(f's_and_b32 s4, s{S_IDX}, 0xfc')
    p.I(f's_sub_u32 s5, s{S_IDX}, 28')
    p.I('s_mul_i32 s5, s5, 7')
    p.I('s_lshl_b32 s7, s7, 8')
    p.I(f's_cmp_ge_u32 s{S_IDX}, 28')
    p.I(f's_cselect_b32 s{S_Q0}, s5, s4')
    p.I(f's_cselect_b32 s{S_N0}, 1024, s7')
    p.I('v_and_b32 v2, 3, v0')
    p.I('v_bfe_u32 v3, v0, 2, 2')
    p.I('v_lshrrev_b32 v4, 4, v0')
    p.I('v_lshrrev_b32 v5, 5, v0')
    p.I('v_and_b32 v6, 31, v0')
    V_FA, V_DA, V_FV, V_DV, V_L16, V_L4, V_TOK = 32, 33, 34, 35, 36, 37, 38
    p.I(f'v_lshlrev_b32 v{V_L16}, 4, v0')
    p.I(f'v_lshlrev_b32 v{V_L4}, 2, v0')
    p.I(f'v_add_u32 v{V_FA}, {FLG}, v{V_L4}')
    p.I(f's_add_u32 s4, s{S_W}, 1')
    p.I('s_and_b32 s4, s4, 7')
    p.I('s_lshl_b32 s4, s4, 8')
    p.I(f'v_add_u32 v{V_DA}, s4, v{V_FA}')
    p.I(f's_sub_u32 s4, s{S_W}, 4')
    p.I('s_cmp_lt_u32 s4, 3')
    p.I('s_cselect_b32 s4, 9, 0')
    p.I(f'v_mov_b32 v{V_DV}, s4')
    p.I(f'ds_write_b32 v{V_DA}, v{V_DV}')
    p.I('v_mov_b32 v7, 0')
    p.I(f'ds_write_b32 v{V_FA}, v7 offset:2048')
    p.I('s_waitcnt lgkmcnt(0)')
    srd(SRD_X, 16, X_BYTES); srd(SRD_K, 18, KV_BYTES); srd(SRD_V, 20, KV_BYTES); srd(SRD_WQ, 22, W_BYTES)
    srd(SRD_WO, 24, W_BYTES); srd(SRD_OUT, 26, X_BYTES); srd(SRD_DBG, 28, 256)
    srd(SRD_WS, 30, (128 << 20) if OPT['stamp'] else WS_BYTES)
    p.I('s_lshl_b32 s15, s2, 8')
    p.I(f's_add_u32 s15, s15, {T_OFF}')
    if OPT['stamp']:
        for k in range(2, 8): p.I(f's_mov_b32 s{64+2*k}, 0')
    stamp(0, True); stamp(1)
    p.I(f's_cmp_eq_u32 s{S_W}, 7')
    p.I('s_cbranch_scc1 L_LOADER')

    V_XA0, V_XA1, V_WL, V_WA, V_XL0, V_XL1 = 10, 11, 12, 13, 14, 15
    V_KL0, V_KL1, V_VL, V_KA0, V_KA1, V_VA = 16, 17, 18, 19, 20, 21
    V_L0, V_L1, V_MX, V_T0, V_TH, V_SK = 22, 23, 24, 25, 27, 28
    KF, VF, PP, QF, NEGM, S0, S1, OA = 40, 72, 104, 112, 144, 160, 176, 192
    S_NEED = 85
    spins = []
    def flag_read(): return f'ds_read_b32 v{V_FV}, v{V_FA}'
    def flag_check():
        l, r = lab('L_SPIN'), lab('L_SRET')
        spins.append((l, r))
        p.I(f'v_cmp_gt_i32 vcc, v{V_TH}, v{V_FV}')
        p.I(f's_cbranch_vccnz {l}')
        p.label(r)
    def release():
        return [f'v_mov_b32 v{V_DV}, s{S_NEED}', f'ds_write_b32 v{V_DA}, v{V_DV}', f's_add_u32 s{S_NEED}, s{S_NEED}, 1', f'v_add_u32 v{V_TH}, 1, v{V_TH}']
    p.I('v_add_u32 v7, 1, v0')
    p.I('v_lshlrev_b32 v7, 8, v7')
    p.I(f'v_add_u32 v7, {FLG}, v7')
    p.I('v_cmp_gt_u32 vcc, 7, v0')
    p.I(f'v_cndmask_b32 v{V_FA}, v{V_FA}, v7, vcc')
    p.I(f'v_cndmask_b32 v{V_SK}, 0, 1, vcc')
    p.I(f'v_mul_u32_u24 v7, {OPT["skq"]+1}, v{V_SK}')
    p.I(f'v_sub_u32 v{V_TH}, 1, v7')
    p.I('v_and_b32 v29, 1, v4')
    p.I('v_lshlrev_b32 v7, 10, v5')
    p.I('v_lshl_add_u32 v7, v3, 6, v7')
    p.I('v_lshl_add_u32 v7, v29, 5, v7')
    p.I(f'v_lshl_add_u32 v{V_VL}, v2, 3, v7')
    p.I('v_lshrrev_b32 v7, 2, v6')
    p.I('v_lshlrev_b32 v7, 10, v7')
    p.I('v_lshl_add_u32 v7, v2, 6, v7')
    p.I(f'v_xor_b32 v{V_KL0}, v5, v3')
    p.I(f'v_lshl_add_u32 v{V_KL0}, v{V_KL0}, 4, v7')
    p.I(f'v_xor_b32 v{V_KL1}, 32, v{V_KL0}')
    p.I(f'v_mov_b32 v{V_FV}, 0')
    EA = 144
    WS = [40, 56]; XSET = [72, 88]
    def kreads(dst, a0, a1, off):
        return [f'ds_read_b128 {vr(dst+4*s2,4)}, v{a1 if s2&1 else a0} offset:{off+(s2>>1)*256}' for s2 in range(8)]
    K0F = VF
    qk0 = [f'{MF} {vr(S0,16)}, {vr(K0F+4*s2,4)}, {vr(QF+4*s2,4)}, {"0" if s2 == 0 else vr(S0,16)}' for s2 in range(8)]
    p.I(f's_cmp_ge_u32 s{S_W}, 4')
    p.I('s_cbranch_scc1 L_QWAIT')
    p.I('v_lshrrev_b32 v7, 3, v6')
    p.I('v_lshlrev_b32 v7, 10, v7')
    p.I('v_and_b32 v30, 1, v3')
    p.I('v_lshl_add_u32 v7, v30, 8, v7')
    p.I('v_lshl_add_u32 v7, v2, 6, v7')
    p.I(f'v_xor_b32 v{V_XL0}, v5, v3')
    p.I(f'v_lshl_add_u32 v{V_XL0}, v{V_XL0}, 4, v7')
    p.I(f's_lshl_b32 s4, s{S_W}, 12')
    p.I(f'v_add_u32 v{V_XL0}, s4, v{V_XL0}')
    p.I(f'v_xor_b32 v{V_XL1}, 32, v{V_XL0}')
    p.I('v_lshlrev_b32 v7, 11, v5')
    p.I('v_lshl_add_u32 v7, v3, 6, v7')
    p.I('v_lshl_add_u32 v7, v29, 5, v7')
    p.I('v_and_b32 v30, 1, v2')
    p.I(f'v_lshl_add_u32 v{V_WL}, v30, 4, v7')
    p.I('v_lshrrev_b32 v30, 1, v2')
    p.I(f'v_lshl_add_u32 v{V_WL}, v30, 3, v{V_WL}')
    p.I(f's_mov_b32 s{S_I}, 0')
    p.I(f's_mov_b32 s{S_NEED}, 1')
    for k in range(3):
        p.I(f's_mov_b32 s{86+k}, {XS[k]}')
        p.I(f's_mov_b32 s{89+k}, {WSL[k]}')
    for r in range(64): p.I(f'v_mov_b32 v{OA+r}, 0')
    for r in range(48): p.I(f'v_mov_b32 v{EA+r}, 0')
    for r in range(16): p.I(f'v_mov_b32 v{WS[1]+r}, 0')
    for r in range(16): p.I(f'v_mov_b32 v{XSET[1]+r}, 0')
    p.I(f's_lshl_b32 s4, s{S_W}, 13')
    p.I(f's_cmp_eq_u32 s{S_W}, 3')
    p.I('s_cselect_b32 s4, 6144, s4')
    p.I('s_cselect_b32 s5, 4, 1')
    p.I('s_lshl_b32 s5, s5, 11')
    p.I(f's_add_u32 s4, s4, {HO}')
    p.I(f'v_add_u32 v29, s4, v{V_L16}')
    p.I('v_add_u32 v30, s5, v29')
    p.I('v_add_u32 v31, s5, v30')
    p.I('s_barrier')
    p.I(f's_cmp_eq_u32 s{S_W}, 3')
    p.I('s_cbranch_scc1 L_QLOOPB')
    def qvariant(V):
        nx = 2 if V == 'A' else 4
        def reads(s):
            X = XSET[s & 1]; W = WS[s & 1]
            x = [f'ds_read_b128 {vr(X+4*j,4)}, v{V_XA1 if s&1 else V_XA0} offset:{(s>>1)*512 + (16384*j if V == "A" else 4096*j)}' for j in range(nx)]
            w = [f'ds_read_b64_tr_b16 {vr(W+4*t+2*u,2)}, v{V_WA} offset:{s*4096+u*1024+t*256}' for t in range(4) for u in range(2)]
            return [x[0]] + w[:2] + x[1:2] + w[2:] + x[2:]
        def qm(s, ext_first=False):
            W = WS[s & 1]; X = XSET[s & 1]
            own = [f'{MF} {vr(OA+16*t,16)}, {vr(W+4*t,4)}, {vr(X,4)}, {vr(OA+16*t,16)}' for t in range(4)]
            if V == 'A': ext = [f'{MF} {vr(EA+16*e,16)}, {vr(W+4*e,4)}, {vr(X+4,4)}, {vr(EA+16*e,16)}' for e in range(3)]
            else: ext = [f'{MF} {vr(EA+16*e,16)}, {vr(W+12,4)}, {vr(X+4+4*e,4)}, {vr(EA+16*e,16)}' for e in range(3)]
            if ext_first: return ext + own
            if V == 'A': return [own[0], ext[0], own[1], ext[1], own[2], ext[2], own[3]]
            return own + ext
        st = len(p.seq)
        p.label(f'L_QLOOP{V}')
        p.I(f'v_add_u32 v{V_WA}, s89, v{V_WL}')
        p.I(f'v_add_u32 v{V_XA0}, s86, v{V_XL0}')
        p.I(f'v_add_u32 v{V_XA1}, s86, v{V_XL1}')
        flag_check()
        grp(qm(3), reads(0), 2)
        grp(qm(0), reads(1), 2)
        grp(qm(1), reads(2) + ['s_mov_b32 s4, s86', 's_mov_b32 s86, s87', 's_mov_b32 s87, s88', 's_mov_b32 s88, s4'], 2)
        m = qm(2)
        grp(m[:-1], reads(3) + release() + [flag_read(), 's_mov_b32 s4, s89', 's_mov_b32 s89, s90', 's_mov_b32 s90, s91', 's_mov_b32 s91, s4',
                                                        f's_add_u32 s{S_I}, s{S_I}, 1', f's_cmp_lt_u32 s{S_I}, 9'], 3)
        p.I(m[-1])
        p.I('s_waitcnt lgkmcnt(0)')
        p.I(f's_cbranch_scc1 L_QLOOP{V}')
        b = p.seq[st:]
        check_hazards(b + b, 'qloop' + V)
        for i in qm(3, True): p.I(i)
    qvariant('A')
    p.I('s_branch L_QDONE')
    qvariant('B')
    p.label('L_QDONE')
    stamp(2)
    p.I(f'v_sub_u32 v{V_TH}, 10, v{V_SK}')
    flag_check()
    p.I(f'v_mul_u32_u24 v7, {OPT["ska"]+1}, v{V_SK}')
    p.I(f'v_sub_u32 v{V_TH}, 10, v7')
    for i in kreads(K0F, V_KL0, V_KL1, 0): p.I(i)
    p.I(f's_mov_b32 s4, {f32(SCALE)}')
    for e in range(3):
        for r in range(16): p.I(f'v_mul_f32 v{EA+16*e+r}, s4, v{EA+16*e+r}')
        for r in range(8): p.I(f'v_cvt_pk_bf16_f32 v{EA+16*e+r}, v{EA+16*e+2*r}, v{EA+16*e+2*r+1}')
        p.I(f'ds_write_b128 v{29+e}, {vr(EA+16*e,4)}')
        p.I(f'ds_write_b128 v{29+e}, {vr(EA+16*e+4,4)} offset:1024')
    for i in kreads(KF, V_KL0, V_KL1, 8192) + release() + [flag_read()]: p.I(i)
    for t in range(4):
        for h in range(2):
            for r in range(8): p.I(f'v_mul_f32 v{OA+16*t+8*h+r}, s4, v{OA+16*t+8*h+r}')
            for r in range(4): p.I(f'v_cvt_pk_bf16_f32 v{QF+8*t+4*h+r}, v{OA+16*t+8*h+2*r}, v{OA+16*t+8*h+2*r+1}')
            if 2*t+h >= 1: p.I(qk0[2*t+h-1])
    p.I(qk0[7])
    p.I('s_branch L_ATT')
    p.label('L_QWAIT')
    p.lds_q = []
    p.I(f's_cmp_lg_u32 s{S_W}, 4')
    p.I('s_cbranch_scc1 L_HK1')
    p.I(f'buffer_store_dword v0, v{V_L4}, {sr(SRD_WS,4)}, s15 offen')
    p.I('s_waitcnt vmcnt(0)')
    p.label('L_HK1')
    p.I('s_barrier')
    p.I(f's_cmp_lg_u32 s{S_W}, 5')
    p.I('s_cbranch_scc1 L_HK2')
    p.I('s_cmp_lg_u32 s2, 0')
    p.I('s_cbranch_scc1 L_HK2')
    p.I('s_memrealtime s[4:5]')
    p.I('s_waitcnt lgkmcnt(0)')
    p.I('s_mul_i32 s5, s5, 0x9e3779b1')
    p.I('s_xor_b32 s4, s4, s5')
    p.I('s_lshl_b32 s4, s4, 4')
    p.I('s_or_b32 s4, s4, 0x80000000')
    p.I('v_mov_b32 v30, s4')
    p.I('v_mov_b32 v29, 0')
    p.I(f'buffer_store_dword v30, v29, {sr(SRD_DBG,4)}, 0 offen sc1')
    p.label('L_HK2')
    p.I('s_waitcnt vmcnt(0)')
    p.I(f's_mov_b32 s{S_NEED}, 10')
    p.I('v_cmp_gt_u32 vcc, 4, v0')
    p.I(f'v_cndmask_b32 v7, v{V_SK}, 0, vcc')
    p.I(f'v_sub_u32 v{V_TH}, 10, v7')
    p.I(f's_sub_u32 s4, s{S_W}, 4')
    p.I('s_lshl_b32 s4, s4, 13')
    p.I(f's_add_u32 s4, s4, {HO}')
    p.I(f'v_add_u32 v29, s4, v{V_L16}')
    flag_check()
    stamp(2)
    kr = kreads(K0F, V_KL0, V_KL1, 0)
    for s2 in range(8):
        p.I(f'ds_read_b128 {vr(QF+4*s2,4)}, v29 offset:{s2*1024}')
        p.I(kr[s2])
    p.I(f'v_mul_u32_u24 v7, {OPT["ska"]+1}, v{V_SK}')
    p.I(f'v_sub_u32 v{V_TH}, 10, v7')
    interleave(qk0, kreads(KF, V_KL0, V_KL1, 8192) + release() + [flag_read()])
    p.label('L_ATT')
    p.lds_q = []
    for r in range(64): p.I(f'v_mov_b32 v{OA+r}, 0')
    p.I(f'v_mov_b32 v{V_L0}, 0')
    p.I(f'v_mov_b32 v{V_L1}, 0')
    def maxtree(S):
        return [f'v_max3_f32 v{V_MX}, v{S}, v{S+1}, v{S+2}', f'v_max3_f32 v{V_T0}, v{S+3}, v{S+4}, v{S+5}',
             f'v_max3_f32 v{V_MX}, v{V_MX}, v{S+6}, v{S+7}', f'v_max3_f32 v{V_T0}, v{V_T0}, v{S+8}, v{S+9}',
             f'v_max3_f32 v{V_MX}, v{V_MX}, v{S+10}, v{S+11}', f'v_max3_f32 v{V_T0}, v{V_T0}, v{S+12}, v{S+13}',
             f'v_max3_f32 v{V_MX}, v{V_MX}, v{S+14}, v{S+15}', f'v_max_f32 v{V_MX}, v{V_MX}, v{V_T0}']
    for i in maxtree(S0): p.I(i)
    p.I(f'v_mov_b32 v{V_T0}, v{V_MX}')
    p.I(f'v_permlane32_swap_b32 v{V_MX}, v{V_T0}')
    p.I(f'v_max_f32 v{V_MX}, v{V_MX}, v{V_T0}')
    for r in range(16):
        p.I(f'v_sub_f32 v{S0+r}, v{S0+r}, v{V_MX}')
        p.I(f'v_sub_f32 v{NEGM+r}, 0, v{V_MX}')
    S_KB, S_VB, S_THR = 86, 87, 88
    p.I(f's_mov_b32 s{S_I}, 0')
    p.I(f's_mov_b32 s{S_KB}, 16384')
    p.I(f's_mov_b32 s{S_VB}, {VTOP-16384}')
    p.I(f's_mov_b32 s{S_THR}, {"0x7f800000" if OPT["nochk"] else f32(THR)}')
    p.I('s_waitcnt lgkmcnt(0)')
    rare = []
    def phaseA(Scur, Snext, voff, do_qk):
        flag_check()
        m = [f'{MF} {vr(Snext,16)}, {vr(KF+4*s2,4)}, {vr(QF+4*s2,4)}, {vr(NEGM,16) if s2 == 0 else vr(Snext,16)}' for s2 in range(8)]
        rd = [f'ds_read_b64_tr_b16 {vr(VF+16*s+4*t+2*u,2)}, v{V_VA} offset:{voff+s*4096+u*2048+t*256}' for s in range(2) for t in range(4) for u in range(2)]
        f = []
        for k in range(8):
            f += [rd[2*k], rd[2*k+1], f'v_exp_f32 v{Scur+2*k}, v{Scur+2*k}', f'v_exp_f32 v{Scur+2*k+1}, v{Scur+2*k+1}']
            if k > 0: f.append(f'v_cvt_pk_bf16_f32 v{PP+k-1}, v{Scur+2*k-2}, v{Scur+2*k-1}')
        f.append(f'v_cvt_pk_bf16_f32 v{PP+7}, v{Scur+14}, v{Scur+15}')
        if do_qk: interleave(m, f)
        else:
            for i in f: p.I(i)
    def phaseB(Scur, Snext, koff, do_k, do_chk, more):
        m = [f'{MF} {vr(OA+16*t,16)}, {vr(VF+16*s+4*t,4)}, {vr(PP+4*s,4)}, {vr(OA+16*t,16)}' for s in range(2) for t in range(4)]
        rd = kreads(KF, V_KA0, V_KA1, koff) if do_k else []
        adds = [f'v_add_f32 v{V_L0 + (r&1)}, v{V_L0 + (r&1)}, v{Scur+r}' for r in range(16)]
        f = []
        for k in range(8):
            if rd and k < 4: f += [rd[2*k], rd[2*k+1]]
            if k == (4 if rd else 0): f += release() + ([flag_read()] if more else [f'ds_read_b32 v{V_FV}, v{V_L4} offset:0'][:0])
            f += [adds[2*k], adds[2*k+1]]
        if do_chk: f += maxtree(Snext)
        interleave(m, f)
        if do_chk:
            l, r = lab('L_RARE'), lab('L_RRET')
            rare.append((l, r, Snext))
            p.I(f'v_cmp_lt_f32 vcc, s{S_THR}, v{V_MX}')
            p.I(f's_cbranch_vccnz {l}')
            p.label(r)
    def body(last):
        p.I(f'v_add_u32 v{V_VA}, s{S_VB}, v{V_VL}')
        if not last:
            p.I(f'v_add_u32 v{V_KA0}, s{S_KB}, v{V_KL0}')
            p.I(f'v_add_u32 v{V_KA1}, s{S_KB}, v{V_KL1}')
        pp = str(OPT['pp'])[1:]
        if pp: p.I(f's_setprio {pp[0]}')
        phaseA(S0, S1, 8192, True)
        if pp: p.I(f's_setprio {pp[1]}')
        phaseB(S0, S1, 0, not last, True, True)
        if pp: p.I(f's_setprio {pp[2]}')
        phaseA(S1, S0, 0, not last)
        if pp: p.I(f's_setprio {pp[3]}')
        phaseB(S1, S0, 8192, not last, not last, not last)
    stamp(3)
    st = len(p.seq)
    p.label('L_ALOOP')
    body(False)
    p.I(f's_add_u32 s{S_KB}, s{S_KB}, 16384')
    p.I(f's_cmp_eq_u32 s{S_KB}, 81920')
    p.I(f's_cselect_b32 s{S_KB}, 0, s{S_KB}')
    p.I(f's_sub_u32 s{S_VB}, s{S_VB}, 16384')
    p.I(f's_cmp_eq_u32 s{S_VB}, {VTOP - NVS*8192 - 16384}')
    p.I(f's_cselect_b32 s{S_VB}, {VTOP-16384}, s{S_VB}')
    p.I(f's_add_u32 s{S_I}, s{S_I}, 1')
    p.I(f's_cmp_lt_u32 s{S_I}, 7')
    p.I('s_waitcnt lgkmcnt(0)')
    p.I('s_cbranch_scc1 L_ALOOP')
    b = p.seq[st:]
    check_hazards(b + b, 'aloop')
    body(True)
    if OPT['pp']: p.I('s_setprio 0')
    stamp(4)
    p.I(f'v_add_u32 v{V_FA}, {FLG}, v{V_L4}')
    p.I(f'ds_read_b32 v{V_FV}, v{V_FA} offset:2048')
    p.I(f'v_add_f32 v{V_L0}, v{V_L0}, v{V_L1}')
    p.I(f'v_mov_b32 v{V_T0}, v{V_L0}')
    p.I(f'v_permlane32_swap_b32 v{V_L0}, v{V_T0}')
    p.I(f'v_add_f32 v{V_L0}, v{V_L0}, v{V_T0}')
    p.I(f'v_rcp_f32 v{V_L0}, v{V_L0}')
    p.I(f's_mul_i32 s6, s{S_G}, 28')
    p.I(f's_and_b32 s7, s{S_IDX}, 3')
    p.I('s_mul_i32 s7, s7, 7')
    p.I('s_add_u32 s6, s6, s7')
    p.I(f's_add_u32 s6, s6, s{S_W}')
    p.I('s_lshl_b32 s4, s6, 16')
    p.I(f's_and_b32 s7, s{S_IDX}, 0xfc')
    p.I('s_lshl_b32 s5, s7, 11')
    p.I('s_add_u32 s4, s4, s5')
    p.I('s_add_u32 s5, s4, 4096')
    p.I('s_lshl_b32 s6, s6, 7')
    p.I('s_add_u32 s6, s6, s7')
    p.I(f's_add_u32 s6, s6, {FO_OFF}')
    p.label('L_MODEW')
    p.I(f'v_cmp_ne_u32 vcc, 0, v{V_FV}')
    p.I('s_cbranch_vccnz L_MODEG')
    p.I(f'ds_read_b32 v{V_FV}, v{V_FA} offset:2048')
    p.I('s_waitcnt lgkmcnt(0)')
    spin_tail('L_MODEW')
    p.label('L_MODEG')
    p.I(f'v_and_b32 v7, 2, v{V_FV}')
    p.I(f'v_and_b32 v{V_TOK}, -16, v{V_FV}')
    p.I('v_cmp_eq_u32 vcc, 2, v7')
    p.I('v_mov_b32 v7, 0')
    p.I('s_cbranch_vccz L_OSLOW')
    def ostore(fl):
        for t in range(4):
            for r in range(16): p.I(f'v_mul_f32 v{OA+16*t+r}, v{OA+16*t+r}, v{V_L0}')
            for r in range(8): p.I(f'v_cvt_pk_bf16_f32 v{QF+8*t+r}, v{OA+16*t+2*r}, v{OA+16*t+2*r+1}')
            for s in range(2):
                f = 2*t+s
                if not OPT['skip'] & 4: p.I(f'buffer_store_dwordx4 {vr(QF+8*t+4*s,4)}, v{V_L16}, {sr(SRD_WS,4)}, s{4 if f<4 else 5} offen offset:{(f&3)*1024}{fl or (" " + OPT["ofl"])}')
        p.I('s_waitcnt vmcnt(0)')
        p.I(f'buffer_store_dword v{V_TOK}, v7, {sr(SRD_WS,4)}, s6 offen{fl}')
    ostore('')
    p.I('s_branch L_P2')
    p.label('L_OSLOW')
    ostore(' sc1')
    p.label('L_P2')
    stamp(5)
    p.I(f's_cmp_ge_u32 s{S_W}, 4')
    p.I('s_cbranch_scc1 L_P2IDLE')
    ACC = 192
    AS = [40, 56, 72, 88]; BS = [104, 112, 120, 128]
    V_AL, V_BL, V_AA, V_BA = 10, 11, 12, 13
    S_SA, S_SB = 86, 87
    for r in range(64): p.I(f'v_mov_b32 v{ACC+r}, 0')
    for r in range(32): p.I(f'v_mov_b32 v{AS[2]+r}, 0')
    for r in range(16): p.I(f'v_mov_b32 v{BS[2]+r}, 0')
    p.I('v_and_b32 v7, 1, v2')
    p.I('v_lshlrev_b32 v7, 5, v7')
    p.I('v_and_b32 v29, 1, v4')
    p.I('v_lshl_add_u32 v7, v29, 4, v7')
    p.I('v_lshrrev_b32 v30, 1, v2')
    p.I('v_lshl_add_u32 v7, v30, 3, v7')
    p.I('v_lshl_add_u32 v7, v3, 6, v7')
    p.I(f'v_mov_b32 v{V_TH}, 27')
    p.I(f'v_mov_b32 v{V_FV}, 0')
    p.I(f's_mov_b32 s{S_I}, 0')
    p.I(f's_cmp_ge_u32 s{S_IDX}, 28')
    p.I('s_cbranch_scc1 L_P2T2')
    RG = {1: dict(a0=49152, astep=16384, aend=81920, awrap=0, b0=98304, bstep=16384, bend=163840, na=5, nb=4),
          2: dict(a0=VTOP-8192, astep=-8192, aend=VTOP-9*8192, awrap=VTOP-8192, b0=0, bstep=28672, bend=86016, na=8, nb=3)}
    def adv(sreg, step, end, wrap):
        l = [f's_add_u32 s{sreg}, s{sreg}, {step}' if step > 0 else f's_sub_u32 s{sreg}, s{sreg}, {-step}',
             f's_cmp_eq_u32 s{sreg}, {end}', f's_cselect_b32 s{sreg}, {wrap}, s{sreg}']
        return l
    def variant(T):
        R = RG[T]
        p.I(f'v_lshl_add_u32 v{V_AL}, v5, {10 if T == 1 else 9}, v7')
        p.I(f's_lshl_b32 s4, s{S_W}, {12 if T == 1 else 13}')
        p.I(f'v_add_u32 v{V_BL}, s4, v{V_L16}')
        p.I(f's_mov_b32 s{S_SA}, {R["a0"]}')
        p.I(f's_mov_b32 s{S_SB}, {R["b0"]}')
        def reads(s):
            A = AS[s]; B = BS[s]
            if T == 1:
                a = [f'ds_read_b64_tr_b16 {vr(A+4*t+2*u,2)}, v{V_AA} offset:{s*4096+u*2048+t*256}' for t in range(4) for u in range(2)]
                b = [f'ds_read_b128 {vr(B,4)}, v{V_BA} offset:{s*1024}']
            else:
                a = [f'ds_read_b64_tr_b16 {vr(A+4*t+2*u,2)}, v{V_AA} offset:{s*2048+u*1024+t*256}' for t in range(2) for u in range(2)]
                b = [f'ds_read_b128 {vr(B+4*q,4)}, v{V_BA} offset:{s*1024+q*4096}' for q in range(2)]
            return b[:1] + a + b[1:]
        def mf(s):
            A = AS[s]; B = BS[s]
            if T == 1: return [f'{MF} {vr(ACC+16*t,16)}, {vr(A+4*t,4)}, {vr(B,4)}, {vr(ACC+16*t,16)}' for t in range(4)]
            return [f'{MF} {vr(ACC+16*(2*q+t),16)}, {vr(A+4*t,4)}, {vr(B+4*q,4)}, {vr(ACC+16*(2*q+t),16)}' for q in range(2) for t in range(2)]
        p.I(f'v_add_u32 v{V_AA}, s{S_SA}, v{V_AL}')
        p.I(f'v_add_u32 v{V_BA}, s{S_SB}, v{V_BL}')
        flag_check()
        st = len(p.seq)
        p.label(f'L_P2LOOP{T}')
        rd = reads(0) + reads(1) + reads(2) + reads(3)
        n = len(rd) // 3
        n0 = min(n, 2 * len(reads(0)))
        grp(mf(2), rd[:n0], 3)
        n1 = min(2 * n, 3 * len(reads(0)))
        grp(mf(3), rd[n0:n1], 3)
        grp(mf(0), rd[n1:] + [flag_read()], 3)
        m = mf(1)
        p.I(m[0])
        for i in adv(S_SA, R['astep'], R['aend'], R['awrap']) + [f'v_add_u32 v{V_TH}, 1, v{V_TH}', f's_add_u32 s{S_I}, s{S_I}, 1']: p.I(i)
        p.I(m[1])
        for i in adv(S_SB, R['bstep'], R['bend'], R['b0']): p.I(i)
        p.I(f's_cmp_ge_u32 s{S_I}, 16')
        p.I('s_waitcnt lgkmcnt(0)')
        p.I('s_barrier')
        p.I(m[2])
        p.I(f's_cbranch_scc1 L_P2X{T}')
        p.I(f'v_add_u32 v{V_AA}, s{S_SA}, v{V_AL}')
        p.I(f'v_add_u32 v{V_BA}, s{S_SB}, v{V_BL}')
        flag_check()
        p.I(m[3])
        p.I(f's_branch L_P2LOOP{T}')
        b = p.seq[st:]
        check_hazards(b + b, f'p2loop{T}')
        p.label(f'L_P2X{T}')
        p.I(m[3])
        for i in mf(2) + mf(3): p.I(i)
    variant(1)
    p.I('s_branch L_XCH')
    p.label('L_P2T2')
    variant(2)
    p.label('L_XCH')
    stamp(6)
    p.I(f's_cmp_eq_u32 s{S_W}, s{S_KQ}')
    p.I('s_cbranch_scc1 L_OWN')
    p.I(f's_lshl_b32 s4, s{S_GRP}, 2')
    p.I(f's_add_u32 s4, s4, s{S_W}')
    p.I('s_lshl_b32 s5, s4, 7')
    p.I('s_lshl_b32 s4, s4, 2')
    p.I(f's_add_u32 s4, s4, s{S_KQ}')
    p.I('s_lshl_b32 s4, s4, 14')
    p.I(f's_add_u32 s4, s4, {P_OFF}')
    BF = OPT['pbf']; NST = 2 if BF else 4
    for t in range(4):
        if t: p.I('s_add_u32 s4, s4, 4096')
        if BF:
            for r in range(8): p.I(f'v_cvt_pk_bf16_f32 v{ACC+16*t+r}, v{ACC+16*t+2*r}, v{ACC+16*t+2*r+1}')
        for g in range(NST):
            p.I(f'buffer_store_dwordx4 {vr(ACC+16*t+4*g,4)}, v{V_L16}, {sr(SRD_WS,4)}, s4 offen offset:{g*1024} sc1')
    p.I(f's_lshl_b32 s4, s{S_KQ}, 2')
    p.I('s_add_u32 s4, s4, s5')
    p.I(f's_add_u32 s4, s4, {FP_OFF}')
    p.I('v_mov_b32 v7, 0')
    p.I('s_waitcnt vmcnt(0)')
    p.I(f'buffer_store_dword v{V_TOK}, v7, {sr(SRD_WS,4)}, s4 offen sc1')
    finish()
    p.label('L_OWN')
    for g in range(16): p.I(f'ds_write_b128 v{V_L16}, {vr(ACC+4*g,4)} offset:{g*1024}')
    p.I(f'v_mov_b32 v{V_DV}, 60')
    p.I(f'ds_write_b32 v{V_DA}, v{V_DV}')
    p.I('s_waitcnt lgkmcnt(0)')
    finish()
    p.label('L_P2IDLE')
    p.lds_q = []
    for _ in range(16): p.I('s_barrier')
    p.label('L_FINAL')
    stamp(6)
    p.I(f's_sub_u32 s14, s{S_W}, 4')
    p.I(f's_lshl_b32 s4, s{S_GRP}, 2')
    p.I(f's_add_u32 s4, s4, s{S_KQ}')
    p.I('s_lshl_b32 s5, s4, 7')
    p.I(f's_add_u32 s5, s5, {FP_OFF}')
    p.I('s_lshl_b32 s4, s4, 16')
    p.I('s_lshl_b32 s6, s14, 12')
    p.I('s_add_u32 s4, s4, s6')
    p.I(f's_add_u32 s4, s4, {P_OFF}')
    p.I('v_lshlrev_b32 v7, 2, v2')
    p.I(f'v_cmp_ne_u32 s[86:87], s{S_KQ}, v2')
    p.I(f's_lshl_b32 s6, s{S_KQ}, 8')
    p.I(f's_add_u32 s6, s6, {FLG+256}')
    p.I('v_mov_b32 v30, s6')
    p.label('L_FP1')
    p.I(f'buffer_load_dword v29, v7, {sr(SRD_WS,4)}, s5 offen sc1')
    p.I('s_waitcnt vmcnt(0)')
    p.I(f'v_cmp_ne_u32 vcc, v{V_TOK}, v29')
    p.I('s_and_b64 vcc, vcc, s[86:87]')
    p.I('s_cbranch_vccz L_GO')
    spin_tail('L_FP1', 2)
    p.label('L_GO')
    stamp(7)
    for k in range(1, 4):
        p.I(f's_add_u32 s6, s{S_KQ}, {k}')
        p.I('s_and_b32 s6, s6, 3')
        p.I('s_lshl_b32 s6, s6, 14')
        p.I('s_add_u32 s6, s6, s4')
        for g in range(NST):
            p.I(f'buffer_load_dwordx4 {vr((64 if BF else ACC)+16*k+4*g,4)}, v{V_L16}, {sr(SRD_WS,4)}, s6 offen offset:{g*1024} sc1')
    p.label('L_FW1')
    p.I('ds_read_b32 v29, v30')
    p.I('s_waitcnt lgkmcnt(0)')
    p.I('v_cmp_gt_u32 vcc, 60, v29')
    p.I('s_cbranch_vccz L_FW2')
    spin_tail('L_FW1', 0)
    p.label('L_FW2')
    p.I('s_lshl_b32 s6, s14, 12')
    p.I(f'v_add_u32 v30, s6, v{V_L16}')
    for g in range(4): p.I(f'ds_read_b128 {vr(ACC+4*g,4)}, v30 offset:{g*1024}')
    p.I('s_movk_i32 s5, 1152')
    p.I('v_mul_lo_u32 v7, v6, s5')
    p.I('v_lshl_add_u32 v7, v5, 5, v7')
    p.I(f's_lshl_b32 s4, s{S_KQ}, 1')
    p.I('s_lshr_b32 s5, s14, 1')
    p.I('s_add_u32 s4, s4, s5')
    p.I('s_and_b32 s6, s14, 1')
    p.I(f's_cmp_ge_u32 s{S_IDX}, 28')
    p.I(f's_cselect_b32 s4, s4, s{S_KQ}')
    p.I('s_cselect_b32 s6, s6, s14')
    p.I('s_cmp_ge_u32 s4, 7')
    p.I('s_cbranch_scc1 L_FIN')
    p.I(f's_add_u32 s4, s4, s{S_Q0}')
    p.I('s_and_b32 s5, s2, 1')
    p.I('s_mul_i32 s5, s5, 28')
    p.I('s_add_u32 s4, s4, s5')
    p.I(f's_mul_i32 s4, s4, {32*1152}')
    p.I('s_lshl_b32 s6, s6, 6')
    p.I('s_add_u32 s4, s4, s6')
    p.I(f's_add_u32 s4, s4, s{S_N0}')
    p.I('s_waitcnt vmcnt(0)')
    if BF:
        for k in range(1, 4):
            for r in range(8):
                p.I(f'v_lshlrev_b32 v{ACC+16*k+2*r}, 16, v{64+16*k+r}')
                p.I(f'v_and_b32 v{ACC+16*k+2*r+1}, 0xffff0000, v{64+16*k+r}')
    for r in range(16):
        p.I(f'v_add_f32 v{ACC+r}, v{ACC+r}, v{ACC+16+r}')
        p.I(f'v_add_f32 v{ACC+32+r}, v{ACC+32+r}, v{ACC+48+r}')
    for r in range(16): p.I(f'v_add_f32 v{ACC+r}, v{ACC+r}, v{ACC+32+r}')
    for r in range(8): p.I(f'v_cvt_pk_bf16_f32 v{40+r}, v{ACC+2*r}, v{ACC+2*r+1}')
    p.I(f'buffer_store_dwordx4 v[40:43], v7, {sr(SRD_OUT,4)}, s4 offen')
    p.I(f'buffer_store_dwordx4 v[44:47], v7, {sr(SRD_OUT,4)}, s4 offen offset:16')
    p.label('L_FIN')
    finish()
    p.auto = False
    for l, ret, S in rare:
        p.label(l)
        p.I('s_nop 15'); p.I('s_nop 15')
        p.I(f'v_mov_b32 v{V_T0}, v{V_MX}')
        p.I('s_nop 1')
        p.I(f'v_permlane32_swap_b32 v{V_MX}, v{V_T0}')
        p.I('s_nop 1')
        p.I(f'v_max3_f32 v{V_MX}, v{V_MX}, v{V_T0}, 0')
        p.I(f'v_exp_f32 v{V_T0}, -v{V_MX}')
        for r in range(16):
            p.I(f'v_sub_f32 v{S+r}, v{S+r}, v{V_MX}')
            p.I(f'v_sub_f32 v{NEGM+r}, v{NEGM+r}, v{V_MX}')
        p.I(f'v_mul_f32 v{V_L0}, v{V_L0}, v{V_T0}')
        p.I(f'v_mul_f32 v{V_L1}, v{V_L1}, v{V_T0}')
        for r in range(64): p.I(f'v_mul_f32 v{OA+r}, v{OA+r}, v{V_T0}')
        p.I('s_nop 3')
        p.I(f's_branch {ret}')
    for l, ret in spins:
        p.label(l)
        p.I(flag_read())
        p.I('s_waitcnt lgkmcnt(0)')
        p.I(f'v_cmp_gt_i32 vcc, v{V_TH}, v{V_FV}')
        p.I(f's_cbranch_vccz {ret}')
        spin_tail(l)
    p.auto = True

    p.label('L_LOADER')
    p.lds_q = []
    VP, VX, VW, V_QA, V_QV, V_Z = 8, 12, 16, 20, 21, 23
    p.I('v_and_b32 v29, 1, v4')
    p.I('v_lshl_add_u32 v7, v29, 2, v3')
    p.I('s_movk_i32 s5, 1152')
    p.I('v_mul_lo_u32 v7, v7, s5')
    p.I('v_lshl_add_u32 v7, v5, 6, v7')
    p.I('v_xor_b32 v30, v2, v29')
    p.I(f'v_lshl_add_u32 v{VX}, v30, 4, v7')
    p.I(f'v_xor_b32 v{VX+1}, 32, v{VX}')
    p.I(f'v_add_u32 v{VX+2}, 16384, v{VX}')
    p.I(f'v_add_u32 v{VX+3}, 24576, v{VX+1}')
    p.I(f'v_add_u32 v{VX+1}, 8192, v{VX+1}')
    p.I('v_lshl_add_u32 v7, v4, 2, v2')
    p.I('v_lshlrev_b32 v7, 4, v7')
    p.I(f'v_lshl_add_u32 v{VW}, v3, 13, v7')
    for q in range(1, 4): p.I(f'v_add_u32 v{VW+q}, {q*(32768-1024)}, v{VW}')
    S_XB, S_WB, S_XO, S_WO = 85, 86, 87, 88
    p.I(f's_mul_i32 s{S_XB}, s{S_B}, 258048')
    p.I(f's_lshl_b32 s{S_WB}, s{S_H}, 8')
    p.I(f'v_mov_b32 v{V_Z}, 0')
    def publish(val):
        p.I(f's_mov_b32 m0, {FLG}')
        if isinstance(val, int): p.I(f's_add_u32 s13, s15, {4*val}')
        else:
            p.I(f's_lshl_b32 s13, {val}, 2')
            p.I('s_add_u32 s13, s13, s15')
        p.I(f'buffer_load_dword v{V_Z}, {sr(SRD_WS,4)}, s13 offen lds')
    def wait_done(val):
        a, bb = lab('L_LW'), lab('L_LX')
        p.label(a)
        p.I(f'ds_read_b32 v{V_QV}, v{V_QA}')
        p.I('s_waitcnt lgkmcnt(0)')
        p.I(f'v_cmp_gt_u32 vcc, {val}, v{V_QV}')
        p.I(f's_cbranch_vccz {bb}')
        spin_tail(a)
        p.label(bb)
    def stage(slot, lw):
        p.I(f's_lshl_b32 s{S_XO}, s{S_KS}, 7')
        p.I(f's_add_u32 s{S_XO}, s{S_XO}, s{S_XB}')
        p.I(f's_lshl_b32 s{S_WO}, s{S_KS}, 19')
        p.I(f's_add_u32 s{S_WO}, s{S_WO}, s{S_WB}')
        for kind, g in [('w', 0), ('w', 1)] + [('x', w) for w in range(7)] + [('w', 2), ('w', 3)]:
            if lw < 63: p.I(f's_waitcnt vmcnt({lw})')
            if kind == 'x':
                p.I(f's_mov_b32 m0, {XS[slot] + g*4096}')
                p.I(f's_add_u32 s13, s{S_XO}, {g*36864}')
                for q in range(4): p.I(f'buffer_load_dwordx4 v{VX+q}, {sr(SRD_X,4)}, s13 offen offset:{q*1024} lds')
            else:
                p.I(f's_mov_b32 m0, {WSL[slot] + g*4096}')
                p.I(f's_add_u32 s13, s{S_WO}, {g*131072}')
                for q in range(4): p.I(f'buffer_load_dwordx4 v{VW+q}, {sr(SRD_WQ,4)}, s13 offen offset:{q*1024} lds')
        p.I(f's_add_u32 s{S_KS}, s{S_KS}, 1')
        p.I(f's_cmp_eq_u32 s{S_KS}, 9')
        p.I(f's_cselect_b32 s{S_KS}, 0, s{S_KS}')
    p.I('v_min_u32 v7, 6, v0')
    p.I('v_lshlrev_b32 v7, 8, v7')
    p.I(f'v_add_u32 v{V_QA}, {FLG+256}, v7')
    for slot in range(3):
        stage(slot, 63)
        if slot == 0: p.I('s_barrier')
        publish(slot + 1)
    p.I(f's_mov_b32 s{S_I}, 3')
    p.label('L_LQ')
    for slot in range(3):
        p.I(f's_sub_u32 s5, s{S_I}, 2')
        wait_done('s5')
        stage(slot, OPT['lw'])
        p.I(f's_add_u32 s{S_I}, s{S_I}, 1')
        publish(f's{S_I}')
    p.I(f's_cmp_lt_u32 s{S_I}, 9')
    p.I('s_cbranch_scc1 L_LQ')
    stamp(2)
    for j in range(4):
        p.I(f'v_xor_b32 v7, {j}, v2')
        p.I('v_lshl_add_u32 v7, v4, 2, v7')
        p.I('v_lshlrev_b32 v7, 4, v7')
        p.I(f'v_lshl_add_u32 v{VP+j}, v3, 8, v7')
    p.I(f's_lshl_b32 s4, s{S_B}, 5')
    p.I(f's_add_u32 s4, s4, s{S_H}')
    p.I('s_lshl_b32 s12, s4, 17')
    def ld(kind, n):
        lds = (n % 10) * 8192 if kind == 'K' else VTOP - 8192 * (1 + n % NVS)
        for half in range(2):
            p.I(f's_mov_b32 m0, {lds + half*4096}')
            p.I(f's_add_u32 s13, s12, {n*8192 + half*4096}')
            for q in range(4):
                p.I(f'buffer_load_dwordx4 v{VP + q if kind == "K" else VP}, {sr(SRD_K if kind == "K" else SRD_V,4)}, s13 offen offset:{q*1024} nt lds')
    def qneed(lo, hi):
        need = 0
        for k in range(3):
            for base, size in ((XS[k], 28672), (WSL[k], 16384)):
                if lo < base + size and base < hi: need = max(need, 7 + k)
        if lo < HO + 24576 and HO < hi: need = max(need, 10)
        return need
    def touch(qbs):
        p.I(f's_mul_i32 s6, s{S_G}, 28')
        p.I(f's_and_b32 s7, s{S_IDX}, 3')
        p.I('s_mul_i32 s7, s7, 7')
        p.I('s_add_u32 s6, s6, s7')
        p.I('s_lshl_b32 s6, s6, 16')
        p.I(f's_and_b32 s7, s{S_IDX}, 0xfc')
        p.I('s_lshl_b32 s7, s7, 11')
        p.I('s_add_u32 s6, s6, s7')
        for qb in qbs:
            for half in range(2):
                if OPT['xw'] < 63: p.I(f's_waitcnt vmcnt({OPT["xw"]})')
                p.I(f's_add_u32 s13, s6, {qb*65536 + half*4096}')
                for q in range(4): p.I(f'buffer_load_dwordx4 {vr(40+4*q,4)}, v{V_L16}, {sr(SRD_WS,4)}, s13 offen offset:{q*1024} sc1')
    got = 6
    tq = 0
    V_R = 24
    p.I(f'buffer_load_dword v{V_TOK}, v{V_Z}, {sr(SRD_DBG,4)}, 0 offen sc1')
    def tok_step1():
        p.I('s_waitcnt vmcnt(40)')
        p.label('L_TK0')
        p.I(f'v_cmp_ne_u32 vcc, 0, v{V_TOK}')
        p.I('s_cbranch_vccnz L_TK1')
        p.I(f'buffer_load_dword v{V_TOK}, v{V_Z}, {sr(SRD_DBG,4)}, 0 offen sc1')
        p.I('s_waitcnt vmcnt(0)')
        spin_tail('L_TK0', 8)
        p.label('L_TK1')
        p.I('s_getreg_b32 s5, hwreg(HW_REG_XCC_ID, 0, 4)')
        p.I(f'v_or_b32 v{V_R}, s5, v{V_TOK}')
        p.I(f's_lshl_b32 s4, s{S_G}, 7')
        p.I(f's_lshl_b32 s5, s{S_IDX}, 2')
        p.I('s_add_u32 s4, s4, s5')
        p.I(f's_add_u32 s4, s4, {REC_OFF}')
        p.I(f'buffer_store_dword v{V_R}, v{V_Z}, {sr(SRD_WS,4)}, s4 offen sc1')
    def tok_step2():
        p.I(f's_lshl_b32 s4, s{S_G}, 7')
        p.I(f's_add_u32 s4, s4, {REC_OFF}')
        p.I('v_lshlrev_b32 v7, 2, v6')
        p.I(f'buffer_load_dword v{V_R+1}, v7, {sr(SRD_WS,4)}, s4 offen sc1')
    def tok_step3():
        p.I('s_waitcnt vmcnt(32)')
        p.I(f'v_cmp_ne_u32 vcc, v{V_R}, v{V_R+1}')
        p.I('s_cmp_eq_u64 vcc, 0')
        p.I(f's_cselect_b32 s5, {1 if OPT["slow"] else 2}, 1')
        p.I(f'v_or_b32 v29, s5, v{V_TOK}')
        p.I(f'ds_write_b32 v{V_DA}, v29 offset:2048')
    for kind, n in [('K', 0), ('K', 1)] + [o for u in range(16) for o in ([('V', u)] + ([('K', u+2)] if u + 2 < 16 else []))]:
        if kind == 'K':
            lds = (n % 10) * 8192
            need = qneed(lds, lds + 8192)
            if n >= 10: need = max(need, 10 if n - 10 < 2 else 11 + n - 12)
            full = 10 if n == 1 else (11 + n - 2 if n >= 2 else None)
        else:
            lds = VTOP - 8192 * (1 + n % NVS)
            need = qneed(lds, lds + 8192)
            if n >= NVS: need = max(need, 11 + n - NVS)
            full = 11 + n if n + 2 >= 16 else None
        if need > got:
            wait_done(need); got = need
        ld(kind, n)
        if full is not None:
            publish(full)
            if full == 12: tok_step1()
            if full == 21: tok_step2()
            if full == 23: tok_step3()
            if OPT['touch'] >= 0 and full - 11 >= OPT['touch'] and tq < 7: touch([tq]); tq += 1
    if OPT['touch'] >= 0 and tq < 7: touch(range(tq, 7))
    stamp(3)
    S_WO2, S_OO, S_LA, S_LB = 85, 86, 87, 88
    p.I(f's_mul_i32 s{S_WO2}, s{S_KQ}, {1024*1152}')
    p.I(f's_add_u32 s{S_WO2}, s{S_WO2}, s{S_N0}')
    p.I(f's_mul_i32 s14, s{S_G}, 28')
    p.I(f's_add_u32 s14, s14, s{S_Q0}')
    p.I(f's_lshl_b32 s{S_OO}, s14, 16')
    p.I('s_lshl_b32 s14, s14, 7')
    p.I(f's_add_u32 s14, s14, {FO_OFF}')
    p.I('s_movk_i32 s5, 1152')
    p.I(f's_cmp_ge_u32 s{S_IDX}, 28')
    p.I('s_cbranch_scc1 L_L2')
    def lvariant(T):
        R = RG[T]
        if T == 1:
            p.I('v_mul_lo_u32 v7, v3, s5')
            p.I('v_lshl_add_u32 v29, v4, 2, v2')
            p.I(f'v_lshl_add_u32 v{VW}, v29, 4, v7')
            for q in range(1, 4): p.I(f'v_add_u32 v{VW+q}, {q*(4*1152-1024)}, v{VW}')
            ngw, rows, nq = 4, 16, 4
            pre_need = [16, 18, 20, 22, 24]
        else:
            p.I('v_lshl_add_u32 v7, v5, 2, v3')
            p.I('v_mul_lo_u32 v7, v7, s5')
            p.I('v_and_b32 v29, 1, v4')
            p.I('v_lshl_add_u32 v29, v29, 2, v2')
            p.I(f'v_lshl_add_u32 v{VW}, v29, 4, v7')
            for q in range(1, 4): p.I(f'v_add_u32 v{VW+q}, {q*(8*1152-1024)}, v{VW}')
            ngw, rows, nq = 2, 32, 7
            pre_need = [19 + i for i in range(8)]
        p.I(f's_mov_b32 s{S_LA}, {R["a0"]}')
        p.I(f's_mov_b32 s{S_LB}, {R["b0"]}')
        def wo_stage():
            for g in range(0 if OPT['skip'] & 1 else ngw):
                p.I(f's_add_u32 m0, s{S_LA}, {g*4096}')
                p.I(f's_add_u32 s13, s{S_WO2}, {g*rows*1152}')
                for q in range(4): p.I(f'buffer_load_dwordx4 v{VW+q}, {sr(SRD_WO,4)}, s13 offen offset:{q*1024} lds')
            p.I(f's_add_u32 s{S_WO2}, s{S_WO2}, {64*1152}')
            for i in adv(S_LA, R['astep'], R['aend'], R['awrap']): p.I(i)
        def o_stage():
            for g in range(0 if OPT['skip'] & 2 else nq):
                p.I(f's_add_u32 m0, s{S_LB}, {g*4096}')
                p.I(f's_add_u32 s13, s{S_OO}, {g << 16}')
                for q in range(4): p.I(f'buffer_load_dwordx4 v{V_L16}, {sr(SRD_WS,4)}, s13 offen offset:{q*1024} {"sc1 " if OPT["osc"] else ""}lds')
            p.I(f's_add_u32 s{S_OO}, s{S_OO}, 4096')
            for i in adv(S_LB, R['bstep'], R['bend'], R['b0']): p.I(i)
            publish(f's{S_I}')
            p.I(f's_add_u32 s{S_I}, s{S_I}, 1')
        step = pre_need[1] - pre_need[0]
        p.I(f's_mov_b32 s6, {pre_need[0]}')
        l = lab('L_PRE')
        p.label(l)
        wait_done('s6')
        if OPT['xw'] < 63: p.I(f's_waitcnt vmcnt({max(OPT["xw"]-12, 0)})')
        wo_stage()
        p.I(f's_add_u32 s6, s6, {step}')
        p.I(f's_cmp_le_u32 s6, {pre_need[-1]}')
        p.I(f's_cbranch_scc1 {l}')
        if OPT['wowarm']:
            p.I(f's_mul_i32 s4, s{S_KQ}, {1024*1152}')
            p.I(f's_mul_i32 s5, s{S_IDX}, 25344')
            p.I('s_add_u32 s4, s4, s5')
            for j in range(7):
                if OPT['xw'] < 63: p.I(f's_waitcnt vmcnt({OPT["xw"]})')
                p.I(f's_add_u32 s5, s4, {320*1152 + j*4096}')
                for q in range(4 if j < 6 else 1): p.I(f'buffer_load_dwordx4 {vr(40+4*q,4)}, v{V_L16}, {sr(SRD_WO,4)}, s5 offen offset:{q*1024}')
        wait_done(26)
        stamp(4)
        p.I('v_lshrrev_b32 v7, 3, v0')
        p.I(f'v_min_u32 v7, {nq-1}, v7')
        p.I('v_lshlrev_b32 v7, 7, v7')
        p.I('v_and_b32 v29, 7, v0')
        p.I('v_lshl_add_u32 v7, v29, 2, v7')
        l, g2 = lab('L_OF'), lab('L_OG')
        p.label(l)
        p.I(f'buffer_load_dword v29, v7, {sr(SRD_WS,4)}, s14 offen sc1')
        p.I('s_waitcnt vmcnt(0)')
        p.I(f'v_cmp_ne_u32 vcc, v{V_TOK}, v29')
        p.I(f's_cbranch_vccz {g2}')
        spin_tail(l, 1)
        p.label(g2)
        stamp(5)
        p.I(f's_mov_b32 s{S_I}, 27')
        l = lab('L_O0')
        p.label(l)
        o_stage()
        p.I(f's_cmp_lt_u32 s{S_I}, {27 + R["nb"]}')
        p.I(f's_cbranch_scc1 {l}')
        p.I('s_mov_b32 s6, 0')
        l, a1, a2 = lab('L_OM'), lab('L_OA'), lab('L_OB')
        p.label(l)
        p.I('s_barrier')
        p.I(f's_cmp_ge_u32 s6, {16 - R["nb"]}')
        p.I(f's_cbranch_scc1 {a1}')
        o_stage()
        p.label(a1)
        p.I(f's_cmp_ge_u32 s6, {16 - R["na"]}')
        p.I(f's_cbranch_scc1 {a2}')
        wo_stage()
        p.label(a2)
        p.I('s_add_u32 s6, s6, 1')
        p.I('s_cmp_lt_u32 s6, 16')
        p.I(f's_cbranch_scc1 {l}')
        p.I('s_branch L_FINAL')
    lvariant(1)
    p.label('L_L2')
    lvariant(2)
    p.label('L_END')
    p.I('s_endpgm')
    p.raw('.p2align 4')
    p.label('L_CODE_END')
    check_hazards(p.seq, 'all')
    return p.text(), KN

def main(out):
    t, kn = gen()
    hdr = open('cdna_kernels/' + NAME + '.s.ref').read().split('; Override')[0]
    s = hdr + '; @launch grid=(256,1,1) block=(512,1,1) lds=163840\n'
    s += '.amdgcn_target "amdgcn-amd-amdhsa--gfx950"\n.text\n' + t
    s += f'''.section .rodata,"a"
.p2align 6
.amdhsa_kernel {kn}
  .amdhsa_next_free_vgpr 256
  .amdhsa_next_free_sgpr 100
  .amdhsa_accum_offset 256
  .amdhsa_group_segment_fixed_size 0
  .amdhsa_kernarg_size 64
  .amdhsa_user_sgpr_count 2
  .amdhsa_user_sgpr_kernarg_segment_ptr 1
  .amdhsa_system_sgpr_workgroup_id_x 1
.end_amdhsa_kernel
'''
    open(out, 'w').write(s)

if __name__ == '__main__':
    for a in sys.argv[2:]:
        k, v = a.split('=')
        OPT[k] = int(v) if v.lstrip('-').isdigit() else v
    main(sys.argv[1])
```
